```python
import torch

def _softmax(x, axis=-1):
    return torch.softmax(x, dim=axis)
def _gelu(x):
    return torch.nn.functional.gelu(x, approximate="tanh")
def _silu(x):
    return torch.nn.functional.silu(x)
def _sigmoid(x):
    return torch.sigmoid(x)
def _layernorm(x, axis=-1, eps=1e-5):
    m = x.mean(dim=axis, keepdim=True)
    v = x.var(dim=axis, keepdim=True, unbiased=False)
    return (x - m) / torch.sqrt(v + eps)
def _scatter_add(tgt, idx, src, axis=0):
    return tgt.clone().index_add_(axis, idx, src)
def _segment_sum(src, seg, n):
    out = torch.zeros((n,) + src.shape[1:], dtype=src.dtype)
    return out.index_add_(0, seg, src)
def _pad(x, pw):
    flat = tuple(v for pair in reversed(pw) for v in pair)
    return torch.nn.functional.pad(x, flat)

kernel_name = 'concat_heads__ssm_conv_s5__mha_block__prompt'

def setup_inputs():

    _w = (lambda a: (lambda t: t.to(torch.bfloat16) if t.is_floating_point() else t)(torch.as_tensor(a)))
    def _A_setup():
        B, S, D = 1, 2048, 512
        P = D
        Lambda_re = -0.5 * (lambda _x: torch.exp(torch.as_tensor(_x)))((lambda *s: torch.randn(*s, dtype=torch.bfloat16) * 0.4)(P))
        Lambda_im = (lambda *s: torch.randn(*s, dtype=torch.bfloat16) * 0.8)(P) * 1.0
        B_re = (lambda *s: torch.randn(*s, dtype=torch.bfloat16) * 0.8)(P, D) * (D ** -0.5)
        B_im = (lambda *s: torch.randn(*s, dtype=torch.bfloat16) * 0.8)(P, D) * (D ** -0.5)
        C_re = (lambda *s: torch.randn(*s, dtype=torch.bfloat16) * 0.4)(D, P) * (P ** -0.5)
        C_im = (lambda *s: torch.randn(*s, dtype=torch.bfloat16) * 0.8)(D, P) * (P ** -0.5)
        log_dt = (lambda *s: torch.randn(*s, dtype=torch.bfloat16) * 0.4)(P) * 0.3 - 2.0
        Dskip = (lambda *s: torch.randn(*s, dtype=torch.bfloat16) * 0.1)(D)
        return {
            "x": _w((lambda *s: torch.randn(*s, dtype=torch.bfloat16) * 0.05)(B, S, D)),
            "Lambda_re": _w(Lambda_re),
            "Lambda_im": _w(Lambda_im),
            "B_re": _w(B_re),
            "B_im": _w(B_im),
            "C_re": _w(C_re),
            "C_im": _w(C_im),
            "log_dt": _w(log_dt),
            "Dskip": _w(Dskip),
        }
    _A_in = _A_setup()

    def _B_setup():
        B, S, D, H = 1, 2048, 512, 32
        return {
            "x": _w((lambda *s: torch.randn(*s, dtype=torch.bfloat16) * 0.2)(B, S, D)),
            "wqkv": _w((lambda *s: torch.randn(*s, dtype=torch.bfloat16) * 0.2)(D, 3 * D)),
            "wo": _w((lambda *s: torch.randn(*s, dtype=torch.bfloat16) * 0.05)(D, D)),
        }
    _B_in = _B_setup()

    return {
        "A_x": _A_in["x"],
        "A_Lambda_re": _A_in["Lambda_re"],
        "A_Lambda_im": _A_in["Lambda_im"],
        "A_B_re": _A_in["B_re"],
        "A_B_im": _A_in["B_im"],
        "A_C_re": _A_in["C_re"],
        "A_C_im": _A_in["C_im"],
        "A_log_dt": _A_in["log_dt"],
        "A_Dskip": _A_in["Dskip"],
        "B_x": _B_in["x"],
        "B_wqkv": _B_in["wqkv"],
        "B_wo": _B_in["wo"],
    }

def reference(A_x, A_Lambda_re, A_Lambda_im, A_B_re, A_B_im, A_C_re, A_C_im, A_log_dt, A_Dskip, B_x, B_wqkv, B_wo):
    def _A_ref(x, Lambda_re, Lambda_im, B_re, B_im, C_re, C_im, log_dt, Dskip):
        Bsz, L, H = x.shape
        Lam = Lambda_re + 1j * Lambda_im
        Bmat = B_re + 1j * B_im
        Cmat = C_re + 1j * C_im
        dt = torch.exp(log_dt)
        Lam_bar = torch.exp(dt * Lam)
        B_bar = ((Lam_bar - 1.0) / Lam)[:, None] * Bmat
        Bu = torch.einsum("bld,pd->blp", x + 0j, B_bar)
        h = torch.zeros_like(Bu[:, 0, :])
        hs = []
        for t in range(L):
            h = Lam_bar[None, :] * h + Bu[:, t, :]
            hs.append(h)
        hseq = torch.stack(hs, 1)
        y = 2.0 * torch.einsum("blp,dp->bld", hseq, Cmat).real + x * Dskip[None, None, :]
        return y

    def _B_ref(x, wqkv, wo):
        B, S, D = x.shape
        H = 32
        Dh = D // H
        qkv = (lambda x, *d: x.permute(*d))((x @ wqkv).reshape(B, S, 3, H, Dh), 2, 0, 3, 1, 4)
        q, k, v = qkv[0], qkv[1], qkv[2]
        scores = torch.einsum("bhqd,bhkd->bhqk", q, k) * (Dh ** -0.5)
        p = _softmax(scores, axis=-1)
        o = torch.einsum("bhqk,bhkd->bhqd", p, v)
        return (lambda x, *d: x.permute(*d))(o, 0, 2, 1, 3).reshape(B, S, D) @ wo

    a = _A_ref(A_x, A_Lambda_re, A_Lambda_im, A_B_re, A_B_im, A_C_re, A_C_im, A_log_dt, A_Dskip)
    b = _B_ref(B_x, B_wqkv, B_wo)
    return torch.concatenate([a, b], axis=-1)
```

```python
class Asm:
    def __init__(self):
        self.lines = []
        self.vm = []
        self.lg = []
    def __call__(self, s):
        for l in s.strip("\n").split("\n"):
            l = l.strip()
            if not l: continue
            if l.endswith(":") and " " not in l:
                self.lines.append(l)
            else:
                self.lines.append("    " + l)
    def label(self, l): self.lines.append(l + ":")
    def c(self, s): self.lines.append("    ; " + s)
    def raw(self, s): self.lines.append(s)
    def vmem(self, s, tag=None):
        self(s); self.vm.append(tag)
    def lds(self, s, tag=None):
        self(s); self.lg.append(tag)
    def wait_vm(self, tags, force=False):
        if not isinstance(tags, (list, set)): tags = [tags]
        idx = [i for i, t in enumerate(self.vm) if t in tags]
        if not idx:
            return
        n = len(self.vm) - 1 - max(idx)
        assert n <= 63, n
        self(f"s_waitcnt vmcnt({n})")
        self.vm = self.vm[max(idx) + 1:]
    def wait_lg(self, tags):
        if not isinstance(tags, (list, set)): tags = [tags]
        idx = [i for i, t in enumerate(self.lg) if t in tags]
        if not idx:
            return
        n = len(self.lg) - 1 - max(idx)
        assert n <= 15, n
        self(f"s_waitcnt lgkmcnt({n})")
        self.lg = self.lg[max(idx) + 1:]
    def wait_vm0(self):
        self("s_waitcnt vmcnt(0)"); self.vm = []
    def wait_lg0(self):
        self("s_waitcnt lgkmcnt(0)"); self.lg = []
    def text(self): return "\n".join(self.lines) + "\n"

def vr(a, n=1):
    return f"v{a}" if n == 1 else f"v[{a}:{a+n-1}]"
def sr(a, n=1):
    return f"s{a}" if n == 1 else f"s[{a}:{a+n-1}]"

def srd(a, d, ptr, nbytes):
    a(f"s_mov_b32 s{d}, s{ptr}")
    a(f"s_mov_b32 s{d+1}, s{ptr+1}")
    a(f"s_mov_b32 s{d+2}, {nbytes:#x}")
    a(f"s_mov_b32 s{d+3}, 0x00020000")

def kernel_head(name):
    return f""".text
.globl {name}
.p2align 8
.type {name},@function
{name}:
"""
def kernel_desc(name, vgpr, sgpr=96):
    acc = (vgpr + 3) // 4 * 4
    return f""".section .rodata,"a"
.p2align 6
.amdhsa_kernel {name}
  .amdhsa_next_free_vgpr {vgpr}
  .amdhsa_next_free_sgpr {sgpr}
  .amdhsa_accum_offset {acc}
  .amdhsa_group_segment_fixed_size 0
  .amdhsa_kernarg_size 120
  .amdhsa_user_sgpr_count 2
  .amdhsa_user_sgpr_kernarg_segment_ptr 1
  .amdhsa_system_sgpr_workgroup_id_x 1
.end_amdhsa_kernel
"""
```

```python
import sys, struct
from asmlib import *

MB = 1 << 20
QF, KF, VF, OF, HF = 0, 2*MB, 4*MB, 6*MB, 8*MB
EB = 12*MB
FH = EB + 128*1024
WS_BYTES = 16*MB
A_X, A_LRE, A_LIM, A_BRE, A_BIM, A_CRE, A_CIM, A_LDT, A_DSK, B_X, B_WQKV, B_WO, OUT, DBG, WS = [8*i for i in range(15)]
MFMA = "v_mfma_f32_32x32x16_bf16"
def f2h(x): return "0x%08x" % struct.unpack("<I", struct.pack("<f", x))[0]
LOG2E = 1.4426950408889634

STAMP = False
STB = 14*MB
def stamp(a, i):
    if STAMP: a(f"s_memtime s[{64+2*i}:{65+2*i}]")
def stamp_flush(a, n, srdreg, kidx, vt=8):
    if not STAMP: return
    a("s_memrealtime s[94:95]")
    a("s_waitcnt lgkmcnt(0)")
    a("s_mov_b64 exec, 1")
    a("s_lshl_b32 s60, s2, 4")
    a("s_add_u32 s60, s60, s20")
    a("s_lshl_b32 s60, s60, 6")
    a(f"s_add_u32 s60, s60, {STB + kidx*262144}")
    a(f"v_mov_b32 v{vt}, 0")
    for i in range(n):
        a(f"v_mov_b32 v{vt+1}, s{64+2*i}")
        a(f"buffer_store_dword v{vt+1}, v{vt}, s[{srdreg}:{srdreg+3}], s60 offen offset:{4*i}")
    a(f"v_mov_b32 v{vt+1}, s94")
    a(f"buffer_store_dword v{vt+1}, v{vt}, s[{srdreg}:{srdreg+3}], s60 offen offset:60")
    a("s_waitcnt vmcnt(0)")

def wave_id(a, sdst, vtmp=1):
    a(f"v_lshrrev_b32 v{vtmp}, 6, v0")
    a("v_and_b32 v0, 63, v0")
    a(f"v_readfirstlane_b32 s{sdst}, v{vtmp}")

def gen_qkv():
    a = Asm()
    a("s_cmp_ge_u32 s2, 256")
    a("s_cbranch_scc1 Lq_end")
    stamp(a, 0)
    a(f"s_load_dwordx4 s[4:7], s[0:1], {B_X}")
    a(f"s_load_dwordx2 s[28:29], s[0:1], {WS}")
    wave_id(a, 20)
    a("""s_and_b32 s30, s2, 7
         s_lshr_b32 s31, s2, 3
         s_lshr_b32 s21, s30, 1
         s_lshl_b32 s21, s21, 2
         s_and_b32 s33, s31, 3
         s_add_u32 s21, s21, s33
         s_and_b32 s22, s30, 1
         s_lshl_b32 s22, s22, 3
         s_lshr_b32 s34, s31, 2
         s_add_u32 s22, s22, s34
         s_lshl_b32 s33, s33, 1
         s_add_u32 s23, s34, s33""")
    a("""s_lshl_b32 s24, s21, 2
         s_add_u32 s24, s24, s20
         s_mov_b32 s35, s24
         s_lshl_b32 s24, s24, 15
         s_mul_i32 s25, s20, 49152
         s_lshl_b32 s33, s22, 6
         s_add_u32 s25, s25, s33
         s_lshl_b32 s26, s20, 14
         s_mul_i32 s27, s20, 3072
         s_add_u32 s27, s27, 65536""")
    for c in range(8):
        a(f"s_add_u32 s33, s23, {c}")
        a("s_and_b32 s33, s33, 7")
        a("s_lshl_b32 s34, s33, 7")
        a(f"s_add_u32 s{40+c}, s24, s34")
        a("s_mul_i32 s34, s33, 196608")
        a(f"s_add_u32 s{48+c}, s25, s34")
    vXa, vXb, vWd, vXr, vWr = 2, 3, 4, 8, 12
    T = 14
    a(f"""v_lshrrev_b32 v{T}, 3, v0
          v_lshlrev_b32 v{T}, 10, v{T}
          v_and_b32 v{T+1}, 7, v0
          v_lshrrev_b32 v{T+2}, 4, v0
          v_xor_b32 v{T+1}, v{T+1}, v{T+2}
          v_lshl_add_u32 v{vXa}, v{T+1}, 4, v{T}
          v_xor_b32 v{vXb}, 64, v{vXa}""")
    for n in range(3):
        a(f"""v_add_u32 v{T}, {64*n}, v0
              v_mul_u32_u24 v{T+1}, 5462, v{T}
              v_lshrrev_b32 v{T+1}, 16, v{T+1}
              v_mul_u32_u24 v{T+2}, 12, v{T+1}
              v_sub_u32 v{T}, v{T}, v{T+2}
              v_mul_u32_u24 v{T+1}, 3072, v{T+1}
              v_lshrrev_b32 v{T+2}, 2, v{T}
              v_lshl_add_u32 v{T+1}, v{T+2}, 10, v{T+1}
              v_and_b32 v{T}, 3, v{T}
              v_lshl_add_u32 v{vWd+n}, v{T}, 4, v{T+1}""")
    a("s_waitcnt lgkmcnt(0)")
    srd(a, 8, 4, 2048*512*2)
    srd(a, 12, 6, 512*1536*2)
    srd(a, 16, 28, WS_BYTES)
    def dma_w(c):
        for n in range(3):
            a(f"s_add_u32 m0, s27, {c*12288 + n*1024}")
            a("s_nop 0")
            a.vmem(f"buffer_load_dwordx4 v{vWd+n}, s[12:15], s{48+c} offen lds", ("w", c))
    def dma_x(c):
        for n in range(4):
            a(f"s_add_u32 m0, s26, {(c&3)*4096 + n*1024}")
            a(f"s_add_u32 s33, s{40+c}, {n*8192}")
            a.vmem(f"buffer_load_dwordx4 v{vXa if n%2==0 else vXb}, s[8:11], s33 offen lds", ("x", c))
    for c in range(4):
        dma_w(c); dma_x(c)
    for c in range(4, 8):
        dma_w(c)
    a(f"""v_and_b32 v{T}, 31, v0
          v_lshrrev_b32 v{T+1}, 1, v{T}
          v_and_b32 v{T+1}, 7, v{T+1}
          v_lshrrev_b32 v{T+2}, 5, v0
          v_xor_b32 v{T+1}, v{T+1}, v{T+2}
          v_lshlrev_b32 v{T+1}, 4, v{T+1}
          v_lshl_add_u32 v{T}, v{T}, 7, s26""")
    for s in range(4):
        a(f"v_xor_b32 v{T+3}, {32*s}, v{T+1}")
        a(f"v_add_u32 v{vXr+s}, v{T}, v{T+3}")
    a(f"""v_lshlrev_b32 v{T}, 3, v{T+2}
          v_bfe_u32 v{T+1}, v0, 2, 2
          v_add_u32 v{T}, v{T}, v{T+1}
          v_mul_u32_u24 v{T}, 192, v{T}
          v_bfe_u32 v{T+1}, v0, 4, 1
          v_lshl_add_u32 v{T}, v{T+1}, 5, v{T}
          v_and_b32 v{T+1}, 3, v0
          v_lshl_add_u32 v{T}, v{T+1}, 3, v{T}
          v_add_u32 v{vWr}, 0x10000, v{T}
          v_add_u32 v{vWr+1}, 0x1c000, v{T}""")
    ACC = [32, 48, 64]; XF = [80, 84]; WF = [88, 100]
    def reads(t):
        c, s, b = t >> 2, t & 3, t & 1
        a.lds(f"ds_read_b128 {vr(XF[b],4)}, v{vXr+s} offset:{(c&3)*4096}", ("r", t))
        for sec in range(3):
            for q in range(2):
                off = (c & 3)*12288 + (16*s + 4*q)*192 + 64*sec
                a.lds(f"ds_read_b64_tr_b16 {vr(WF[b]+4*sec+2*q,2)}, v{vWr+(c>>2)} offset:{off}", ("r", t))
    def chunk_ready(c):
        a.wait_vm([("w", c), ("x", c)])
        a("s_barrier")
    stamp(a, 1)
    chunk_ready(0)
    stamp(a, 2)
    reads(0)
    for t in range(32):
        c, s, b = t >> 2, t & 3, t & 1
        if t + 1 < 32:
            if s == 3: chunk_ready(c + 1)
            reads(t + 1)
        a.wait_lg(("r", t))
        cin = lambda i: ("0" if t == 0 else vr(ACC[i], 16))
        a(f"{MFMA} {vr(ACC[0],16)}, {vr(WF[b],4)}, {vr(XF[b],4)}, {cin(0)}")
        a(f"{MFMA} {vr(ACC[1],16)}, {vr(WF[b]+4,4)}, {vr(XF[b],4)}, {cin(1)}")
        a(f"{MFMA} {vr(ACC[2],16)}, {vr(XF[b],4)}, {vr(WF[b]+8,4)}, {cin(2)}")
        if s == 3 and c + 4 < 8: dma_x(c + 4)
        if t == 15: stamp(a, 3)
    stamp(a, 4)
    a(f"""v_lshlrev_b32 v2, 4, v0
          v_bfe_u32 v3, v0, 4, 1
          v_lshlrev_b32 v3, 16, v3
          v_lshrrev_b32 v4, 5, v0
          v_lshl_add_u32 v3, v4, 8, v3
          v_and_b32 v4, 15, v0
          v_lshl_add_u32 v3, v4, 4, v3
          s_lshl_b32 s33, s22, 17
          s_lshl_b32 s34, s35, 10
          s_add_u32 s33, s33, s34
          s_add_u32 s36, s33, {QF}
          s_add_u32 s37, s33, {QF+65536}
          s_add_u32 s38, s33, {KF}
          s_add_u32 s39, s33, {KF+65536}
          s_add_u32 s34, s33, {VF}""")
    sc = f2h(0.25*LOG2E)
    for r in range(16): a(f"v_mul_f32 v{ACC[0]+r}, {sc}, v{ACC[0]+r}")
    P = 80
    for j in range(8): a(f"v_cvt_pk_bf16_f32 v{P+j}, v{ACC[0]+2*j}, v{ACC[0]+2*j+1}")
    a(f"buffer_store_dwordx4 {vr(P,4)}, v2, s[16:19], s36 offen")
    a(f"buffer_store_dwordx4 {vr(P+4,4)}, v2, s[16:19], s37 offen")
    for j in range(8): a(f"v_cvt_pk_bf16_f32 v{P+8+j}, v{ACC[1]+2*j}, v{ACC[1]+2*j+1}")
    a(f"buffer_store_dwordx4 {vr(P+8,4)}, v2, s[16:19], s38 offen")
    a(f"buffer_store_dwordx4 {vr(P+12,4)}, v2, s[16:19], s39 offen")
    for j in range(8): a(f"v_cvt_pk_bf16_f32 v{P+16+j}, v{ACC[2]+2*j}, v{ACC[2]+2*j+1}")
    a(f"buffer_store_dwordx4 {vr(P+16,4)}, v3, s[16:19], s34 offen")
    a(f"buffer_store_dwordx4 {vr(P+20,4)}, v3, s[16:19], s34 offen offset:512")
    stamp(a, 5)
    if STAMP:
        a("s_waitcnt vmcnt(0)")
        stamp(a, 6)
        stamp_flush(a, 7, 16, 0, vt=120)
        a("s_mov_b64 exec, -1")
    a(f"""s_cmp_gt_u32 s20, 1
          s_cbranch_scc1 Lq_end
          s_bfe_u32 s33, s2, 0x10003
          s_sub_u32 s33, 0, s33
          s_lshl_b32 s34, s2, 9
          s_add_u32 s34, s34, {EB}
          s_lshl_b32 s36, s2, 4
          s_add_u32 s36, s36, {FH}
          s_cmp_eq_u32 s20, 0
          s_cselect_b32 s33, s33, 0
          s_cselect_b32 s34, s34, s36
          s_cselect_b32 exec_lo, -1, 1
          s_mov_b32 exec_hi, 0
          v_mov_b32 v8, s33
          v_mov_b32 v9, s33
          v_mov_b32 v10, s33
          v_mov_b32 v11, s33
          buffer_store_dwordx4 v[8:11], v2, s[16:19], s34 offen""")
    a.label("Lq_end")
    a("s_endpgm")
    return a.text(), 128

KR, VR_, S0, S1, PR, OR_, QA, QB = 8, 40, 104, 120, 136, 144, 160, 164
RED = 0
ONES = "0x3f803f80"
def gen_attn_body(a, pfx):
    a("""s_and_b32 s30, s2, 7
         s_lshr_b32 s31, s2, 3
         s_lshl_b32 s21, s30, 2
         s_lshr_b32 s33, s31, 3
         s_add_u32 s21, s21, s33
         s_and_b32 s22, s31, 7""")
    a(f"""s_lshl_b32 s33, s21, 16
          s_lshl_b32 s34, s20, 13
          s_add_u32 s34, s34, s33
          s_add_u32 s24, s34, {KF}
          s_add_u32 s25, s34, {KF+4096}
          s_add_u32 s26, s34, {VF}
          s_add_u32 s27, s34, {VF+4096}
          s_lshl_b32 s34, s22, 13
          s_add_u32 s28, s34, s33
          s_add_u32 s28, s28, {QF}""")
    a("""v_lshlrev_b32 v1, 4, v0
         v_lshrrev_b32 v2, 5, v0
         v_lshlrev_b32 v2, 8, v2
         v_and_b32 v7, 15, v0
         v_lshl_add_u32 v2, v7, 4, v2
         s_mul_i32 s33, s20, 1280
         v_add_u32 v3, s33, v1
         v_lshl_add_u32 v5, v0, 2, s33""")
    def ldk(kt):
        a.vmem(f"buffer_load_dwordx4 {vr(KR+4*kt,4)}, v1, s[8:11], s{24+(kt>>2)} offen offset:{(kt&3)*1024}", ("K", kt))
    def ldv(kt):
        a("s_mov_b64 exec, s[36:37]")
        for m in range(2):
            a.vmem(f"buffer_load_dwordx4 {vr(VR_+8*kt+4*m,4)}, v2, s[8:11], s{26+(kt>>2)} offen offset:{(kt&3)*1024+m*512}", ("V", kt, m))
        a("s_mov_b64 exec, -1")
    def ones(kt):
        for r in range(8): a(f"v_mov_b32 v{VR_+8*kt+r}, v4")
    a("s_mov_b32 s36, 0xffff")
    a("s_mov_b32 s37, 0xffff")
    a("s_setprio 1")
    a.vmem(f"buffer_load_dwordx4 {vr(QA,4)}, v1, s[8:11], s28 offen", ("Q", 0))
    ldk(0); ldk(1)
    a(f"v_mov_b32 v4, {ONES}")
    ones(0); ldv(0)
    for kt in range(1, 8): ones(kt)
    ldk(2); ldv(1)
    stamp(a, 1)
    SB = [S0, S1]
    def step(i, Qcur, Qnext, first, drain_off, last_body):
        S = SB[i & 1]; Sn = SB[(i + 1) & 1]
        E = lambda r: a(f"v_exp_f32 v{S+r}, v{S+r}")
        C = lambda j: a(f"v_cvt_pk_bf16_f32 v{PR+j}, v{S+2*j}, v{S+2*j+1}")
        def pv(kt, m, zero=False):
            a.wait_vm(("V", kt, m))
            a(f"{MFMA} {vr(OR_,16)}, {vr(VR_+8*kt+4*m,4)}, {vr(PR+4*m,4)}, {'0' if zero else vr(OR_,16)}")
        if i < 7:
            a.wait_vm(("K", i + 1))
            a(f"{MFMA} {vr(Sn,16)}, {vr(KR+4*(i+1),4)}, {vr(Qcur,4)}, 0")
        elif not last_body:
            a.wait_vm(("Q", 1))
            a(f"{MFMA} {vr(Sn,16)}, {vr(KR,4)}, {vr(Qnext,4)}, 0")
        if first:
            if i + 3 < 8: ldk(i + 3)
            if i + 2 < 8: ldv(i + 2)
        if i == (5 if first else 0) and not last_body:
            a("s_add_u32 s28, s28, 1024")
            a.vmem(f"buffer_load_dwordx4 {vr(Qnext,4)}, v1, s[8:11], s28 offen", ("Q", 1))
        E(0); E(1); E(2); E(3); C(0); E(4); E(5)
        if not (i == 0 and first): pv((i - 1) & 7, 1)
        C(1); E(6); E(7); C(2); E(8); C(3); E(9); E(10)
        if i != 0: pv(i, 0)
        E(11); C(4); E(12); E(13); C(5); E(14)
        if i == 0:
            if not first: drain(S, drain_off)
            pv(0, 0, zero=True)
        E(15); C(6); C(7)
    def drain(T, off):
        for j in range(4): a(f"v_cvt_pk_bf16_f32 v{T+j}, v{OR_+2*j}, v{OR_+2*j+1}")
        a(f"ds_write_b32 v5, v{OR_+8} offset:{RED + off + 1024}")
        a(f"ds_write_b128 v3, {vr(T,4)} offset:{RED + off}")
    def body(j, Qcur, Qnext, first=False, last=False, drain_off=0):
        for i in range(8): step(i, Qcur, Qnext, first, drain_off, last)
    a.wait_vm([("Q", 0), ("K", 0)])
    a(f"{MFMA} {vr(S0,16)}, {vr(KR,4)}, {vr(QA,4)}, 0")
    a("s_nop 7")
    a("s_nop 3")
    stamp(a, 2)
    body(0, QA, QB, first=True)
    a.wait_vm0()
    stamp(a, 3)
    a("s_mov_b32 s29, 3")
    a.label(pfx + "_loop")
    body(1, QB, QA, drain_off=0)
    body(2, QA, QB, drain_off=10240)
    a("v_add_u32 v3, 20480, v3")
    a("v_add_u32 v5, 20480, v5")
    a("s_sub_u32 s29, s29, 1")
    a("s_cmp_lg_u32 s29, 0")
    a(f"s_cbranch_scc1 {pfx}_loop")
    stamp(a, 4)
    a("s_setprio 0")
    body(7, QB, QA, last=True, drain_off=0)
    stamp(a, 5)
    a("s_nop 1")
    a(f"{MFMA} {vr(OR_,16)}, {vr(VR_+8*7+4,4)}, {vr(PR+4,4)}, {vr(OR_,16)}")
    a("s_lshl_b32 s33, s22, 3")
    a("s_add_u32 s33, s33, s20")
    a("s_lshl_b32 s34, s33, 15")
    a("s_lshl_b32 s35, s21, 10")
    a("s_add_u32 s34, s34, s35")
    a(f"s_add_u32 s34, s34, {OF}")
    a("s_nop 5")
    drain(S0, 10240)
    a("s_mul_i32 s35, s20, 10240")
    a("v_add_u32 v3, s35, v1")
    a("v_lshl_add_u32 v5, v0, 2, s35")
    a("s_waitcnt lgkmcnt(0)")
    a("s_barrier")
    stamp(a, 6)
    T = KR
    for w in range(8):
        a(f"ds_read_b128 {vr(T+4*w,4)}, v3 offset:{RED + w*1280}")
        a(f"ds_read_b32 v{S0+w}, v5 offset:{RED + w*1280 + 1024}")
    for w in range(8):
        a(f"s_waitcnt lgkmcnt({min(15, 14-2*w)})")
        for j in range(4):
            if w == 0:
                a(f"v_lshlrev_b32 v{OR_+2*j}, 16, v{T+j}")
                a(f"v_and_b32 v{OR_+2*j+1}, 0xffff0000, v{T+j}")
            else:
                a(f"v_lshlrev_b32 v{S1+2*j}, 16, v{T+4*w+j}")
                a(f"v_and_b32 v{S1+2*j+1}, 0xffff0000, v{T+4*w+j}")
        if w == 0: a(f"v_mov_b32 v{OR_+8}, v{S0}")
        else:
            for r in range(8): a(f"v_add_f32 v{OR_+r}, v{OR_+r}, v{S1+r}")
            a(f"v_add_f32 v{OR_+8}, v{OR_+8}, v{S0+w}")
    a(f"""v_max3_f32 v7, abs(v{OR_}), abs(v{OR_+1}), abs(v{OR_+2})
          v_max3_f32 v7, abs(v{OR_+3}), abs(v{OR_+4}), v7
          v_max3_f32 v7, abs(v{OR_+5}), abs(v{OR_+6}), v7
          v_max_f32 v7, abs(v{OR_+7}), v7
          v_add_f32 v5, v{OR_}, v{OR_+1}
          v_add_f32 v5, v5, v{OR_+2}
          v_add_f32 v5, v5, v{OR_+3}
          v_add_f32 v5, v5, v{OR_+4}
          v_add_f32 v5, v5, v{OR_+5}
          v_add_f32 v5, v5, v{OR_+6}
          v_add_f32 v5, v5, v{OR_+7}
          v_cmp_o_f32 s[38:39], v5, v5
          v_cmp_gt_f32 vcc, 0x7e800000, v7
          s_and_b64 s[38:39], s[38:39], vcc
          v_cmp_le_f32 vcc, 0x1f800000, v{OR_+8}
          s_and_b64 s[38:39], s[38:39], vcc
          v_cmp_ge_f32 vcc, 0x5f800000, v{OR_+8}
          s_and_b64 s[38:39], s[38:39], vcc
          s_cmp_eq_u64 s[38:39], -1
          s_cbranch_scc0 {pfx}_slow""")
    a.label(pfx + "_fin")
    a(f"v_rcp_f32 v7, v{OR_+8}")
    a("s_nop 0")
    for r in range(8): a(f"v_mul_f32 v{OR_+r}, v7, v{OR_+r}")
    for j in range(4): a(f"v_cvt_pk_bf16_f32 v{PR+j}, v{OR_+2*j}, v{OR_+2*j+1}")
    a(f"buffer_store_dwordx4 {vr(PR,4)}, v1, s[8:11], s34 offen")
    stamp(a, 7)
    stamp_flush(a, 8, 8, 1)
    a("s_endpgm")
    a.label(pfx + "_slow")
    a(f"""s_lshl_b32 s35, s21, 16
          s_lshl_b32 s33, s33, 10
          s_add_u32 s33, s33, s35
          s_add_u32 s33, s33, {QF}
          buffer_load_dwordx4 {vr(QA,4)}, v1, s[8:11], s33 offen
          s_add_u32 s24, s35, {KF}
          s_add_u32 s26, s35, {VF}
          v_mov_b32 v7, 0xff800000
          s_mov_b32 s29, 0""")
    a.label(pfx + "_mx")
    a(f"""s_add_u32 s33, s24, s29
          buffer_load_dwordx4 {vr(KR,4)}, v1, s[8:11], s33 offen
          s_waitcnt vmcnt(0)
          {MFMA} {vr(S0,16)}, {vr(KR,4)}, {vr(QA,4)}, 0
          s_nop 15""")
    for j in range(8): a(f"v_max3_f32 v7, v{S0+2*j}, v{S0+2*j+1}, v7")
    a(f"""s_add_u32 s29, s29, 1024
          s_cmp_lt_u32 s29, 65536
          s_cbranch_scc1 {pfx}_mx
          v_mov_b32 v5, v7
          s_nop 1
          v_permlane32_swap_b32 v5, v7
          s_nop 1
          v_max_f32 v7, v5, v7
          v_sub_f32 v7, 0, v7""")
    for r in range(16): a(f"v_mov_b32 v{S1+r}, v7")
    for r in range(16): a(f"v_mov_b32 v{OR_+r}, 0")
    a("s_mov_b32 s29, 0")
    a.label(pfx + "_sl")
    a(f"""s_add_u32 s33, s24, s29
          buffer_load_dwordx4 {vr(KR,4)}, v1, s[8:11], s33 offen
          s_add_u32 s33, s26, s29
          s_mov_b64 exec, s[36:37]
          buffer_load_dwordx4 {vr(VR_,4)}, v2, s[8:11], s33 offen
          buffer_load_dwordx4 {vr(VR_+4,4)}, v2, s[8:11], s33 offen offset:512
          s_mov_b64 exec, -1
          s_waitcnt vmcnt(0)
          {MFMA} {vr(S0,16)}, {vr(KR,4)}, {vr(QA,4)}, {vr(S1,16)}
          s_nop 15""")
    for r in range(16): a(f"v_exp_f32 v{S0+r}, v{S0+r}")
    a("s_nop 0")
    for j in range(8): a(f"v_cvt_pk_bf16_f32 v{PR+j}, v{S0+2*j}, v{S0+2*j+1}")
    a(f"""s_nop 1
          {MFMA} {vr(OR_,16)}, {vr(VR_,4)}, {vr(PR,4)}, {vr(OR_,16)}
          {MFMA} {vr(OR_,16)}, {vr(VR_+4,4)}, {vr(PR+4,4)}, {vr(OR_,16)}
          s_add_u32 s29, s29, 1024
          s_cmp_lt_u32 s29, 65536
          s_cbranch_scc1 {pfx}_sl
          s_nop 15
          s_branch {pfx}_fin""")

def gen_attn():
    a = Asm()
    a("s_cmp_ge_u32 s2, 256")
    a("s_cbranch_scc1 La_end")
    stamp(a, 0)
    a(f"s_load_dwordx2 s[4:5], s[0:1], {WS}")
    wave_id(a, 20)
    a("s_waitcnt lgkmcnt(0)")
    srd(a, 8, 4, WS_BYTES)
    gen_attn_body(a, "La")
    a.label("La_end")
    a("s_endpgm")
    return a.text(), 168

def reduce4_and_pick(a, ACC, vL, lds_base_sgpr_stride, region, sync, wave=20):
    stride = lds_base_sgpr_stride
    a(f"s_mul_i32 s33, s{wave}, {stride}")
    a(f"s_add_u32 s33, s33, {region}")
    a(f"v_add_u32 v4, s33, v{vL}")
    for t in range(4):
        for q in range(4):
            a(f"ds_write_b128 v4, {vr(ACC[t]+4*q,4)} offset:{t*4096+q*1024}")
    a("s_waitcnt lgkmcnt(0)")
    sync()
    a(f"s_lshl_b32 s33, s{wave}, 12")
    a(f"s_add_u32 s33, s33, {region}")
    a(f"v_add_u32 v4, s33, v{vL}")
    if 3*stride + 3072 > 65535:
        a(f"v_add_u32 v5, {2*stride}, v4")
    for w in range(4):
        for q in range(4):
            if 3*stride + 3072 > 65535 and w >= 2:
                a(f"ds_read_b128 {vr(ACC[w]+4*q,4)}, v5 offset:{(w-2)*stride+q*1024}")
            else:
                a(f"ds_read_b128 {vr(ACC[w]+4*q,4)}, v4 offset:{w*stride+q*1024}")
        if w == 1: pass
    a("s_waitcnt lgkmcnt(8)")
    for r in range(16): a(f"v_add_f32 v{ACC[0]+r}, v{ACC[0]+r}, v{ACC[1]+r}")
    a("s_waitcnt lgkmcnt(0)")
    for r in range(16): a(f"v_add_f32 v{ACC[2]+r}, v{ACC[2]+r}, v{ACC[3]+r}")
    for r in range(16): a(f"v_add_f32 v{ACC[0]+r}, v{ACC[0]+r}, v{ACC[2]+r}")

def gen_wo():
    a = Asm()
    a("s_cmp_ge_u32 s2, 256")
    a("s_cbranch_scc1 Lo_end")
    stamp(a, 0)
    a(f"s_load_dwordx4 s[4:7], s[0:1], {B_WO}")
    a(f"s_load_dwordx2 s[28:29], s[0:1], {WS}")
    wave_id(a, 20)
    a("""s_and_b32 s30, s2, 7
         s_lshr_b32 s31, s2, 3
         s_lshl_b32 s21, s30, 2
         s_and_b32 s33, s31, 3
         s_add_u32 s21, s21, s33
         s_lshr_b32 s22, s31, 2""")
    a(f"""s_lshl_b32 s24, s21, 16
          s_lshl_b32 s33, s20, 13
          s_add_u32 s24, s24, s33
          s_add_u32 s24, s24, {OF}
          s_add_u32 s25, s24, 4096
          s_add_u32 s26, s24, 32768
          s_add_u32 s27, s24, 36864
          s_lshl_b32 s35, s20, 17
          s_lshl_b32 s33, s22, 7
          s_add_u32 s35, s35, s33
          s_lshl_b32 s36, s20, 14""")
    a("""v_lshlrev_b32 v1, 4, v0
         v_lshrrev_b32 v2, 3, v0
         v_lshlrev_b32 v2, 10, v2
         v_and_b32 v3, 7, v0
         v_bfe_u32 v4, v0, 4, 1
         v_lshlrev_b32 v4, 2, v4
         v_xor_b32 v3, v3, v4
         v_lshl_add_u32 v2, v3, 4, v2""")
    a("s_waitcnt lgkmcnt(0)")
    srd(a, 8, 4, 512*512*2)
    srd(a, 12, 6, 2048*1024*4)
    srd(a, 16, 28, WS_BYTES)
    OFR = 96
    for hh in range(8):
        for n in range(2):
            a(f"s_add_u32 m0, s36, {(2*hh+n)*1024}")
            a(f"s_add_u32 s33, s35, {(2*hh+n)*8192}")
            a.vmem(f"buffer_load_dwordx4 v2, s[8:11], s33 offen lds", ("h", hh))
        for t in range(2):
            a.vmem(f"buffer_load_dwordx4 {vr(OFR+8*hh+4*t,4)}, v1, s[16:19], s{24+2*t+(hh>>2)} offen offset:{(hh&3)*1024}", ("h", hh))
    a("""v_lshrrev_b32 v5, 5, v0
         v_lshlrev_b32 v5, 2, v5
         v_bfe_u32 v6, v0, 2, 2
         v_add_u32 v5, v5, v6
         v_lshlrev_b32 v5, 7, v5
         v_bfe_u32 v6, v0, 3, 1
         v_lshl_add_u32 v5, v6, 6, v5
         v_bfe_u32 v6, v0, 4, 1
         v_lshl_add_u32 v5, v6, 5, v5
         v_and_b32 v6, 3, v0
         v_lshl_add_u32 v5, v6, 3, v5
         v_add_u32 v6, s36, v5
         v_xor_b32 v7, 64, v6""")
    ACC = [32, 48, 64, 80]; WFR = [8, 16]
    def reads(hh):
        a.wait_vm(("h", hh))
        for nb in range(2):
            for q in range(2):
                a.lds(f"ds_read_b64_tr_b16 {vr(WFR[hh&1]+4*nb+2*q,2)}, v{6+nb} offset:{hh*2048+q*1024}", ("r", hh))
    stamp(a, 1)
    reads(0)
    stamp(a, 2)
    for hh in range(8):
        if hh + 1 < 8: reads(hh + 1)
        a.wait_lg(("r", hh))
        for t in range(2):
            for nb in range(2):
                A = ACC[2*t+nb]
                a(f"{MFMA} {vr(A,16)}, {vr(OFR+8*hh+4*t,4)}, {vr(WFR[hh&1]+4*nb,4)}, {'0' if hh==0 else vr(A,16)}")
    a("""s_lshr_b32 s33, s20, 1
         s_lshl_b32 s34, s21, 1
         s_add_u32 s33, s33, s34
         s_lshl_b32 s33, s33, 17
         s_and_b32 s34, s20, 1
         s_lshl_b32 s37, s22, 1
         s_add_u32 s34, s34, s37
         s_lshl_b32 s34, s34, 7
         s_add_u32 s33, s33, s34
         s_add_u32 s38, s33, 2048
         v_lshrrev_b32 v2, 5, v0
         v_lshlrev_b32 v2, 14, v2
         v_and_b32 v3, 31, v0
         v_lshl_add_u32 v2, v3, 2, v2""")
    stamp(a, 3)
    reduce4_and_pick(a, ACC, 1, 16384, 0, lambda: a("s_barrier"))
    stamp(a, 4)
    for r in range(16):
        row = 8*(r >> 2) + (r & 3)
        a(f"s_add_u32 s33, s38, {row*4096}")
        a(f"buffer_store_dword v{ACC[0]+r}, v2, s[12:15], s33 offen")
    stamp(a, 5)
    if STAMP:
        a("s_waitcnt vmcnt(0)")
        stamp(a, 6)
        stamp_flush(a, 7, 16, 2)
    a.label("Lo_end")
    a("s_endpgm")
    return a.text(), 160

SSMB = 81920
SREG = 18432
EXB = SSMB + 4*SREG
CNT = EXB + 3840
LDS_TOTAL = CNT + 64
SPIN = 1 << 16
def ssm_lds_init(a):
    a(f"""v_lshlrev_b32 v2, 4, v0
          v_mov_b32 v4, 0
          v_mov_b32 v5, 0
          v_mov_b32 v6, 0
          v_mov_b32 v7, 0
          v_add_u32 v2, {EXB}, v2
          ds_write_b128 v2, v[4:7]
          ds_write_b128 v2, v[4:7] offset:768
          v_mov_b32 v2, {CNT}
          ds_write_b128 v2, v[4:7]""")

def lds_sync(a, idx, lbl, vA=14, vT=15):
    a(f"""v_mov_b32 v{vA}, {CNT + 4*idx}
          v_mov_b32 v{vT}, 1
          s_mov_b64 exec, 1
          ds_add_u32 v{vA}, v{vT}
          s_mov_b64 exec, -1
          s_mov_b32 s39, {SPIN}""")
    a.label(lbl)
    a(f"""ds_read_b32 v{vT}, v{vA}
          s_sub_u32 s39, s39, 1
          s_cbranch_scc1 {lbl}_x
          s_waitcnt lgkmcnt(0)
          v_readfirstlane_b32 s33, v{vT}
          s_cmp_ge_u32 s33, 4
          s_cbranch_scc0 {lbl}""")
    a.label(lbl + "_x")
    a("s_waitcnt lgkmcnt(0)")
    a.lg = []

def gen_ssm_body(a, pfx):
    a(f"s_load_dwordx8 s[52:59], s[0:1], {A_X}")
    a(f"s_load_dwordx2 s[60:61], s[0:1], {A_BIM}")
    a(f"s_load_dwordx2 s[62:63], s[0:1], {A_LDT}")
    a("""s_setprio 3
         s_and_b32 s30, s2, 7
         s_lshr_b32 s31, s2, 3
         s_lshr_b32 s21, s30, 1
         s_lshl_b32 s21, s21, 2
         s_and_b32 s33, s31, 3
         s_add_u32 s21, s21, s33
         s_and_b32 s22, s30, 1
         s_lshl_b32 s22, s22, 3
         s_lshr_b32 s34, s31, 2
         s_add_u32 s22, s22, s34
         s_lshl_b32 s23, s34, 1
         s_lshl_b32 s33, s33, 2
         s_add_u32 s23, s23, s33""")
    a(f"""s_lshl_b32 s24, s21, 2
          s_add_u32 s24, s24, s20
          s_mov_b32 s29, s24
          s_lshl_b32 s24, s24, 15
          s_lshl_b32 s25, s22, 15
          s_mul_i32 s26, s20, {SREG}
          s_add_u32 s26, s26, {SSMB}""")
    vX, vB, vR = 2, 3, 4
    a(f"""v_lshlrev_b32 v1, 4, v0
          v_and_b32 v8, 3, v0
          v_bfe_u32 v9, v0, 4, 2
          v_xor_b32 v8, v8, v9
          v_lshlrev_b32 v8, 4, v8
          v_lshrrev_b32 v9, 2, v0
          v_lshl_add_u32 v{vB}, v9, 10, v8
          v_bfe_u32 v9, v0, 2, 2
          v_bfe_u32 v10, v0, 4, 1
          v_lshl_add_u32 v9, v10, 4, v9
          v_bfe_u32 v10, v0, 5, 1
          v_lshl_add_u32 v9, v10, 2, v9
          v_lshl_add_u32 v{vX}, v9, 10, v8
          v_and_b32 v8, 31, v0
          v_bfe_u32 v9, v0, 2, 2
          v_lshrrev_b32 v10, 5, v0
          v_xor_b32 v9, v9, v10
          v_lshlrev_b32 v9, 4, v9
          v_lshl_add_u32 v9, v8, 6, v9
          v_add_u32 v{vR}, s26, v9
          v_xor_b32 v9, 32, v9
          v_add_u32 v{vR+1}, s26, v9
          s_lshl_b32 s33, s22, 6
          v_lshl_add_u32 v8, v8, 1, s33""")
    a("s_waitcnt lgkmcnt(0)")
    srd(a, 12, 52, 2048*512*2)
    srd(a, 16, 58, 512*512*2)
    srd(a, 40, 60, 512*512*2)
    PA, PB_, PD = 6, 7, 9
    a.vmem(f"global_load_ushort v{PA}, v8, s[54:55]", "par")
    a.vmem(f"global_load_ushort v{PB_}, v8, s[56:57]", "par")
    a.vmem(f"global_load_ushort v{PD}, v8, s[62:63]", "par")
    def dma1(c):
        base = (c % 3)*6144
        a(f"s_add_u32 s33, s23, {c}")
        a("s_and_b32 s33, s33, 15")
        a("s_lshl_b32 s33, s33, 6")
        a("s_add_u32 s34, s33, s24")
        a("s_add_u32 s35, s33, s25")
        for n in range(2):
            a(f"s_add_u32 m0, s26, {base + n*1024}")
            a(f"s_add_u32 s33, s34, {n*8192}")
            a.vmem(f"buffer_load_dwordx4 v{vX}, s[12:15], s33 offen lds", ("a", c))
        for mat in range(2):
            for n in range(2):
                a(f"s_add_u32 m0, s26, {base + 2048 + mat*2048 + n*1024}")
                a(f"s_add_u32 s33, s35, {n*16384}")
                a.vmem(f"buffer_load_dwordx4 v{vB}, s[{16+24*mat}:{19+24*mat}], s33 offen lds", ("a", c))
    for c in range(3): dma1(c)
    LR, LI, NLI, L16R, L16I, L128R, L128I, LKR, LKI, LSR, LSI, SGR, NSI, NSR, ZR, ZI = range(128, 144)
    a.wait_vm("par")
    a(f"""v_lshlrev_b32 v{PA}, 16, v{PA}
          v_lshlrev_b32 v{PB_}, 16, v{PB_}
          v_lshlrev_b32 v{PD}, 16, v{PD}
          v_mul_f32 v{PD}, {f2h(LOG2E)}, v{PD}
          v_exp_f32 v{PD}, v{PD}
          s_nop 0
          v_cvt_pk_bf16_f32 v{PD}, v{PD}, v{PD}
          v_and_b32 v{PD}, 0xffff0000, v{PD}
          v_mul_f32 v{ZR}, v{PD}, v{PA}
          v_mul_f32 v{ZI}, v{PD}, v{PB_}
          v_mul_f32 v{ZR}, {f2h(LOG2E)}, v{ZR}
          v_mul_f32 v{ZI}, {f2h(0.15915494309189535)}, v{ZI}""")
    def cpow(dr, di, n):
        a(f"""v_mul_f32 v10, {n}, v{ZR}
              v_mul_f32 v11, {n}, v{ZI}
              v_exp_f32 v10, v10
              v_fract_f32 v11, v11
              v_cos_f32 v{dr}, v11
              v_sin_f32 v{di}, v11
              s_nop 0
              v_mul_f32 v{dr}, v10, v{dr}
              v_mul_f32 v{di}, v10, v{di}""")
    cpow(LR, LI, "1.0"); cpow(L16R, L16I, f2h(16.0)); cpow(L128R, L128I, f2h(128.0)); cpow(LKR, LKI, f2h(1024.0))
    a(f"""v_lshrrev_b32 v12, 5, v0
          s_lshl_b32 s33, s20, 1
          v_add_u32 v12, s33, v12
          v_lshlrev_b32 v13, 4, v12
          v_cvt_f32_u32 v13, v13""")
    cpow(LSR, LSI, "v13")
    a(f"""v_sub_f32 v{NLI}, 0, v{LI}
          v_mul_f32 v10, v{PA}, v{PA}
          v_fmac_f32 v10, v{PB_}, v{PB_}
          v_rcp_f32 v10, v10
          v_subrev_f32 v11, 1.0, v{LR}
          v_add_f32 v10, v10, v10
          v_mul_f32 v{SGR}, v11, v{PA}
          v_fmac_f32 v{SGR}, v{LI}, v{PB_}
          v_mul_f32 v{NSI}, v11, v{PB_}
          v_fmac_f32 v{NSI}, v{NLI}, v{PA}
          v_mul_f32 v{SGR}, v10, v{SGR}
          v_mul_f32 v{NSI}, v10, v{NSI}
          v_sub_f32 v{NSR}, 0, v{SGR}""")
    stamp(a, 1)
    UR, UI = 16, 32
    FR = [48, 72]
    def reads1(c):
        a.wait_vm(("a", c))
        for mat in range(3):
            for s in range(2):
                a.lds(f"ds_read_b128 {vr(FR[c&1]+8*mat+4*s,4)}, v{vR+s} offset:{(c%3)*6144 + mat*2048}", ("r", c))
    reads1(0)
    for c in range(16):
        if c + 1 < 16: reads1(c + 1)
        a.wait_lg(("r", c))
        if c + 3 < 16: dma1(c + 3)
        F = FR[c & 1]
        for s in range(2):
            z = c == 0 and s == 0
            a(f"{MFMA} {vr(UR,16)}, {vr(F+4*s,4)}, {vr(F+8+4*s,4)}, {'0' if z else vr(UR,16)}")
            a(f"{MFMA} {vr(UI,16)}, {vr(F+4*s,4)}, {vr(F+16+4*s,4)}, {'0' if z else vr(UI,16)}")
    stamp(a, 2)
    a(f"s_load_dwordx4 s[52:55], s[0:1], {A_CRE}")
    a(f"s_load_dwordx2 s[56:57], s[0:1], {A_DSK}")
    a(f"s_load_dwordx2 s[58:59], s[0:1], {OUT}")
    a("""s_lshl_b32 s27, s30, 2
         s_and_b32 s33, s31, 3
         s_add_u32 s27, s27, s33
         s_lshr_b32 s28, s31, 2
         s_lshl_b32 s36, s28, 16
         s_lshl_b32 s33, s20, 8
         s_add_u32 s36, s36, s33""")
    a("s_waitcnt lgkmcnt(0)")
    srd(a, 16, 52, 512*512*2)
    srd(a, 40, 54, 512*512*2)
    srd(a, 48, 58, 2048*1024*4)
    def dma2(g):
        pbi, mat = g >> 1, g & 1
        for n in range(4):
            a(f"s_add_u32 m0, s26, {(g & 3)*4096 + n*1024}")
            a(f"s_add_u32 s33, s36, {n*16384 + pbi*64}")
            a.vmem(f"buffer_load_dwordx4 v{vB}, s[{16+24*mat}:{19+24*mat}], s33 offen lds", ("c", g))
    for g in range(4): dma2(g)
    E = [(48, 49), (50, 51)]
    pr, pi = UR, UI
    for r in range(1, 16):
        er, ei = E[r & 1]
        a(f"v_fma_f32 v{er}, v{LR}, v{pr}, v{UR+r}")
        a(f"v_fma_f32 v{ei}, v{LR}, v{pi}, v{UI+r}")
        a(f"v_fmac_f32 v{er}, v{NLI}, v{pi}")
        a(f"v_fmac_f32 v{ei}, v{LI}, v{pr}")
        pr, pi = er, ei
    a(f"""s_lshl_b32 s33, s20, 9
          s_add_u32 s33, s33, {EXB + 7*256}
          v_lshl_add_u32 v10, v0, 3, s33
          ds_write_b64 v10, v[50:51]
          v_and_b32 v11, 31, v0
          v_lshlrev_b32 v11, 3, v11
          v_lshl_add_u32 v10, v12, 8, v11
          v_add_u32 v10, {EXB}, v10
          s_waitcnt lgkmcnt(0)""")
    lds_sync(a, 0, pfx + "_s0")
    for i in range(7): a(f"ds_read_b64 {vr(52+2*i,2)}, v10 offset:{i*256}")
    def horner(dst, src0, n, mr, mi, tmp):
        pr, pi = src0, src0 + 1
        for i in range(1, n):
            er, ei = (dst, dst + 1) if i == n - 1 else (tmp + 2*(i & 1), tmp + 2*(i & 1) + 1)
            a(f"v_fma_f32 v{er}, v{mr}, v{pr}, v{src0+2*i}")
            a(f"v_fma_f32 v{ei}, v{mr}, v{pi}, v{src0+2*i+1}")
            a(f"v_fma_f32 v{er}, -v{mi}, v{pi}, v{er}")
            a(f"v_fmac_f32 v{ei}, v{mi}, v{pr}")
            pr, pi = er, ei
    a("s_waitcnt lgkmcnt(0)")
    PIN = 68
    horner(PIN, 52, 7, L16R, L16I, 72)
    a(f"""v_fma_f32 v70, v{L16R}, v{PIN}, v50
          v_fma_f32 v71, v{L16R}, v{PIN+1}, v51
          v_fma_f32 v70, -v{L16I}, v{PIN+1}, v70
          v_fmac_f32 v71, v{L16I}, v{PIN}
          v_max_f32 v70, v70, v70
          v_max_f32 v71, v71, v71
          s_lshl_b32 s34, s22, 13
          s_lshl_b32 s33, s21, 8
          s_add_u32 s34, s34, s33
          s_add_u32 s34, s34, {EB}
          s_add_u32 s35, s34, 4096
          s_cmp_eq_u32 s20, 3
          s_cbranch_scc0 {pfx}_nopub
          s_mov_b32 exec_lo, 0
          buffer_store_dwordx2 v[70:71], v11, s[8:11], s35 offen sc1
          s_mov_b32 exec_lo, -1""")
    a.label(pfx + "_nopub")
    stamp(a, 3)
    a(f"""v_lshrrev_b32 v10, 5, v0
          v_lshl_add_u32 v10, v10, 11, v11
          s_mov_b32 s39, {SPIN}""")
    a.label(pfx + "_ep")
    for i in range(8): a(f"buffer_load_dwordx2 {vr(48+2*i,2)}, v10, s[8:11], s34 offen offset:{i*256} sc1")
    a(f"""s_sub_u32 s39, s39, 1
          s_cbranch_scc1 {pfx}_ex
          s_waitcnt vmcnt(0)
          v_max3_u32 v13, v48, v49, v50""")
    for i in range(51, 63, 2): a(f"v_max3_u32 v13, v{i}, v{i+1}, v13")
    a(f"""v_max_u32 v13, v63, v13
          v_cmp_eq_u32 vcc, -1, v13
          s_and_b64 vcc, exec, vcc
          s_cbranch_vccz {pfx}_ex
          s_sleep 4
          s_branch {pfx}_ep""")
    a.label(pfx + "_ex")
    a.wait_vm0()
    stamp(a, 4)
    horner(64, 48, 8, L128R, L128I, 72)
    a(f"""v_mov_b32 v66, v64
          v_mov_b32 v67, v65
          s_nop 1
          v_permlane32_swap_b32 v64, v66
          v_permlane32_swap_b32 v65, v67
          s_nop 1
          v_fma_f32 v66, v{LKR}, v64, v66
          v_fma_f32 v67, v{LKR}, v65, v67
          v_fma_f32 v66, -v{LKI}, v65, v66
          v_fmac_f32 v67, v{LKI}, v64
          v_fmac_f32 v{PIN}, v{LSR}, v66
          v_fmac_f32 v{PIN+1}, v{LSR}, v67
          v_fma_f32 v{PIN}, -v{LSI}, v67, v{PIN}
          v_fmac_f32 v{PIN+1}, v{LSI}, v66""")
    HR, HI = 48, 56
    pr, pi = PIN, PIN + 1
    for r in range(16):
        a(f"v_fmac_f32 v{UR+r}, v{LR}, v{pr}")
        a(f"v_fmac_f32 v{UI+r}, v{LR}, v{pi}")
        a(f"v_fmac_f32 v{UR+r}, v{NLI}, v{pi}")
        a(f"v_fmac_f32 v{UI+r}, v{LI}, v{pr}")
        pr, pi = UR + r, UI + r
        t = 72 + 2*(r & 1)
        a(f"v_mul_f32 v{t}, v{SGR}, v{pr}")
        a(f"v_mul_f32 v{t+1}, v{NSI}, v{pr}")
        a(f"v_fmac_f32 v{t}, v{NSI}, v{pi}")
        a(f"v_fmac_f32 v{t+1}, v{NSR}, v{pi}")
        if r & 1:
            a(f"v_cvt_pk_bf16_f32 v{HR+(r>>1)}, v72, v74")
            a(f"v_cvt_pk_bf16_f32 v{HI+(r>>1)}, v73, v75")
    a(f"""v_and_b32 v10, 31, v0
          v_lshlrev_b32 v10, 6, v10
          v_lshrrev_b32 v11, 5, v0
          v_lshl_add_u32 v10, v11, 5, v10
          s_add_u32 s33, s26, 16384
          v_add_u32 v10, s33, v10
          v_lshlrev_b32 v11, 3, v11
          v_bfe_u32 v13, v0, 2, 2
          v_add_u32 v11, v11, v13
          v_lshlrev_b32 v11, 6, v11
          v_bfe_u32 v13, v0, 4, 1
          v_lshl_add_u32 v11, v13, 5, v11
          v_and_b32 v13, 3, v0
          v_lshl_add_u32 v11, v13, 3, v11
          v_add_u32 v11, s33, v11
          s_lshl_b32 s34, s29, 4
          s_add_u32 s34, s34, s22
          s_lshl_b32 s35, s34, 2
          s_add_u32 s35, s35, {FH}
          s_lshl_b32 s34, s34, 12
          s_add_u32 s34, s34, {HF}""")
    HT = 76
    for mat, H in enumerate((HR, HI)):
        a(f"ds_write_b128 v10, {vr(H,4)}")
        a(f"ds_write_b128 v10, {vr(H+4,4)} offset:16")
        for sp in range(2):
            for q in range(2):
                a(f"ds_read_b64_tr_b16 {vr(HT+8*mat+4*sp+2*q,2)}, v11 offset:{(16*sp+4*q)*64}")
    a("s_waitcnt lgkmcnt(4)")
    for sp in range(2): a(f"buffer_store_dwordx4 {vr(HT+4*sp,4)}, v1, s[8:11], s34 offen offset:{sp*1024} sc1")
    a("s_waitcnt lgkmcnt(0)")
    for sp in range(2): a(f"buffer_store_dwordx4 {vr(HT+8+4*sp,4)}, v1, s[8:11], s34 offen offset:{2048+sp*1024} sc1")
    a(f"""v_mov_b32 v13, 1
          v_mov_b32 v10, 0
          s_waitcnt vmcnt(0)
          s_mov_b64 exec, 1
          buffer_store_dword v13, v10, s[8:11], s35 offen sc1
          s_mov_b64 exec, -1""")
    stamp(a, 5)
    a(f"""v_bfe_u32 v10, v0, 2, 1
          v_lshlrev_b32 v10, 4, v10
          v_and_b32 v11, 3, v0
          v_add_lshl_u32 v10, v10, v11, 2
          s_lshl_b32 s33, s27, 7
          s_lshl_b32 s34, s20, 4
          s_add_u32 s34, s34, s33
          s_add_u32 s34, s34, {FH}
          s_mov_b32 s39, {SPIN}""")
    a.label(pfx + "_hp")
    a(f"""buffer_load_dword v13, v10, s[8:11], s34 offen sc1
          s_sub_u32 s39, s39, 1
          s_cbranch_scc1 {pfx}_hx
          s_waitcnt vmcnt(0)
          v_cmp_ne_u32 vcc, 1, v13
          s_and_b64 vcc, exec, vcc
          s_cbranch_vccz {pfx}_hx
          s_sleep 4
          s_branch {pfx}_hp""")
    a.label(pfx + "_hx")
    a.wait_vm0()
    stamp(a, 6)
    a(f"""s_lshl_b32 s24, s27, 17
          s_lshl_b32 s33, s20, 14
          s_add_u32 s24, s24, s33
          s_add_u32 s24, s24, {HF}""")
    ACC = [16, 32, 48, 64]; HFR = 80; CF = 144
    def ldh(g):
        for half in range(2):
            for t in range(2):
                k = 2*g + half
                a(f"s_add_u32 s33, s24, {t*65536 + (k>>2)*4096}")
                a.vmem(f"buffer_load_dwordx4 {vr(HFR+16*(g&3)+8*half+4*t,4)}, v1, s[8:11], s33 offen offset:{(k&3)*1024} sc1", ("h", g))
    for g in range(4): ldh(g)
    for g in range(8):
        a.wait_vm([("c", g), ("h", g)])
        for half in range(2):
            for b in range(2):
                a.lds(f"ds_read_b128 {vr(CF+8*half+4*b,4)}, v{vR+half} offset:{(g&3)*4096 + b*2048}", ("r", half))
        for half in range(2):
            a.wait_lg(("r", half))
            if half == 1 and g + 4 < 8: dma2(g + 4)
            for t in range(2):
                for b in range(2):
                    A = ACC[2*t+b]
                    a(f"{MFMA} {vr(A,16)}, {vr(HFR+16*(g&3)+8*half+4*t,4)}, {vr(CF+8*half+4*b,4)}, {'0' if g==0 and half==0 else vr(A,16)}")
        if g + 4 < 8: ldh(g + 4)
    stamp(a, 7)
    a("""s_lshr_b32 s33, s20, 1
         s_lshl_b32 s34, s27, 1
         s_add_u32 s33, s33, s34
         s_and_b32 s34, s20, 1
         s_lshl_b32 s35, s28, 1
         s_add_u32 s34, s34, s35
         s_lshl_b32 s37, s33, 17
         s_lshl_b32 s35, s34, 7
         s_add_u32 s37, s37, s35
         s_lshl_b32 s38, s33, 15
         s_lshl_b32 s35, s34, 6
         s_add_u32 s38, s38, s35
         v_and_b32 v3, 31, v0
         v_lshrrev_b32 v10, 5, v0
         v_lshlrev_b32 v2, 14, v10
         v_lshl_add_u32 v2, v3, 2, v2
         v_lshlrev_b32 v10, 12, v10
         v_lshl_add_u32 v10, v3, 1, v10
         v_lshl_add_u32 v11, v3, 1, s35""")
    XS = 96
    a(f"global_load_ushort v{XS+16}, v11, s[56:57]")
    for r in range(16):
        row = 8*(r >> 2) + (r & 3)
        a(f"s_add_u32 s33, s38, {(row>>2)*4096}")
        a(f"buffer_load_ushort v{XS+r}, v10, s[12:15], s33 offen offset:{(row&3)*1024}")
    reduce4_and_pick(a, ACC, 1, SREG, SSMB, lambda: lds_sync(a, 1, pfx + "_s1"))
    a("s_waitcnt vmcnt(0)")
    a(f"v_lshlrev_b32 v{XS+16}, 16, v{XS+16}")
    for r in range(16):
        row = 8*(r >> 2) + (r & 3)
        a(f"v_lshlrev_b32 v{XS+r}, 16, v{XS+r}")
        a(f"s_add_u32 s33, s37, {row*4096}")
        a(f"v_fmac_f32 v{ACC[0]+r}, v{XS+r}, v{XS+16}")
        a(f"buffer_store_dword v{ACC[0]+r}, v2, s[48:51], s33 offen")
    stamp(a, 8)
    stamp_flush(a, 9, 8, 3)
    a("s_endpgm")

def gen_ssm():
    a = Asm()
    a("s_cmp_ge_u32 s2, 256")
    a("s_cbranch_scc1 Ls_end")
    stamp(a, 0)
    a(f"s_load_dwordx2 s[4:5], s[0:1], {WS}")
    wave_id(a, 20)
    ssm_lds_init(a)
    a("s_waitcnt lgkmcnt(0)")
    a("s_barrier")
    srd(a, 8, 4, WS_BYTES)
    gen_ssm_body(a, "Ls")
    a.label("Ls_end")
    a("s_endpgm")
    return a.text(), 168

HEADER = open("concat_heads__ssm_conv_s5__mha_block__prompt.s.ref").read().split("; Override launch")[0]

def build(kernels, launches):
    s = HEADER
    for (name, grid, block, lds) in launches:
        s += f"; @launch kernel={name} grid=({grid},1,1) block=({block},1,1) lds={lds}\n"
    s += '.amdgcn_target "amdgcn-amd-amdhsa--gfx950"\n'
    for name, (txt, vg) in kernels.items():
        s += kernel_head(name) + txt
    for name, (txt, vg) in kernels.items():
        s += kernel_desc(name, vg)
    return s

if __name__ == "__main__":
    out = sys.argv[1] if len(sys.argv) > 1 else "out.s"
    STAMP = "stamp" in sys.argv[2:]
    kernels = {"qkv_kernel": gen_qkv(), "attn_kernel": gen_attn(), "wo_kernel": gen_wo(), "ssm_kernel": gen_ssm()}
    launches = [("qkv_kernel", 256, 256, 163840), ("attn_kernel", 256, 512, 81920), ("wo_kernel", 256, 256, 65536), ("ssm_kernel", 256, 256, LDS_TOTAL)]
    open(out, "w").write(build(kernels, launches))
```

```python
import sys, struct
from asmlib import *

MB = 1 << 20
QF, KF, VF, OF, HF = 0, 2*MB, 4*MB, 6*MB, 8*MB
EB = 12*MB
FH = EB + 128*1024
WS_BYTES = 16*MB
A_X, A_LRE, A_LIM, A_BRE, A_BIM, A_CRE, A_CIM, A_LDT, A_DSK, B_X, B_WQKV, B_WO, OUT, DBG, WS = [8*i for i in range(15)]
MFMA = "v_mfma_f32_32x32x16_bf16"
def f2h(x): return "0x%08x" % struct.unpack("<I", struct.pack("<f", x))[0]
LOG2E = 1.4426950408889634

STAMP = False
STB = 14*MB
HDIAG = None
def stamp(a, i):
    if STAMP: a(f"s_memtime s[{64+2*i}:{65+2*i}]")
    if STAMP and HDIAG and i == 0: a("s_memrealtime s[92:93]")
def stamp_flush(a, n, srdreg, kidx, vt=8):
    if not STAMP: return
    if HDIAG:
        li, sa, sb = HDIAG[kidx]
        a(f"""s_memrealtime s[94:95]
              s_load_dwordx2 s[60:61], s[0:1], {DBG}
              s_waitcnt lgkmcnt(0)
              s_or_b32 s62, s2, s20
              s_cmp_eq_u32 s62, 0
              s_cbranch_scc0 Lhd{kidx}
              s_sub_u32 s60, s60, {li*512 - li*16}
              s_subb_u32 s61, s61, 0
              s_sub_u32 s62, s{64+2*sa}, s64
              s_sub_u32 s63, s{64+2*sb}, s64
              s_mov_b64 exec, 1
              v_mov_b32 v{vt}, s92
              v_mov_b32 v{vt+1}, s94
              v_mov_b32 v{vt+2}, s62
              v_mov_b32 v{vt+3}, s63
              v_mov_b32 v{vt+4}, 0
              global_store_dwordx4 v{vt+4}, v[{vt}:{vt+3}], s[60:61]
              s_waitcnt vmcnt(0)""")
        a.label(f"Lhd{kidx}")
        return
    a("s_memrealtime s[94:95]")
    a("s_waitcnt lgkmcnt(0)")
    a("s_mov_b64 exec, 1")
    a("s_lshl_b32 s60, s2, 4")
    a("s_add_u32 s60, s60, s20")
    a("s_lshl_b32 s60, s60, 6")
    a(f"s_add_u32 s60, s60, {STB + kidx*262144}")
    a(f"v_mov_b32 v{vt}, 0")
    for i in range(n):
        a(f"v_mov_b32 v{vt+1}, s{64+2*i}")
        a(f"buffer_store_dword v{vt+1}, v{vt}, s[{srdreg}:{srdreg+3}], s60 offen offset:{4*i}")
    a(f"v_mov_b32 v{vt+1}, s94")
    a(f"buffer_store_dword v{vt+1}, v{vt}, s[{srdreg}:{srdreg+3}], s60 offen offset:60")
    a("s_waitcnt vmcnt(0)")

def wave_id(a, sdst, vtmp=1):
    a(f"v_lshrrev_b32 v{vtmp}, 6, v0")
    a("v_and_b32 v0, 63, v0")
    a(f"v_readfirstlane_b32 s{sdst}, v{vtmp}")

def gen_qkv():
    a = Asm()
    a("s_cmp_ge_u32 s2, 256")
    a("s_cbranch_scc1 Lq_end")
    stamp(a, 0)
    a(f"s_load_dwordx4 s[4:7], s[0:1], {B_X}")
    a(f"s_load_dwordx2 s[28:29], s[0:1], {WS}")
    wave_id(a, 20)
    a("""s_and_b32 s30, s2, 7
         s_lshr_b32 s31, s2, 3
         s_lshr_b32 s21, s30, 1
         s_lshl_b32 s21, s21, 2
         s_and_b32 s33, s31, 3
         s_add_u32 s21, s21, s33
         s_and_b32 s22, s30, 1
         s_lshl_b32 s22, s22, 3
         s_lshr_b32 s34, s31, 2
         s_add_u32 s22, s22, s34
         s_lshl_b32 s33, s33, 1
         s_add_u32 s23, s34, s33""")
    a("""s_lshl_b32 s24, s21, 2
         s_add_u32 s24, s24, s20
         s_mov_b32 s35, s24
         s_lshl_b32 s24, s24, 15
         s_mul_i32 s25, s20, 49152
         s_lshl_b32 s33, s22, 6
         s_add_u32 s25, s25, s33
         s_lshl_b32 s26, s20, 14
         s_mul_i32 s27, s20, 3072
         s_add_u32 s27, s27, 65536""")
    for c in range(8):
        a(f"s_add_u32 s33, s23, {c}")
        a("s_and_b32 s33, s33, 7")
        a("s_lshl_b32 s34, s33, 7")
        a(f"s_add_u32 s{40+c}, s24, s34")
        a("s_mul_i32 s34, s33, 196608")
        a(f"s_add_u32 s{48+c}, s25, s34")
    vXa, vXb, vWd, vXr, vWr = 2, 3, 4, 8, 12
    T = 14
    a(f"""v_lshrrev_b32 v{T}, 3, v0
          v_lshlrev_b32 v{T}, 10, v{T}
          v_and_b32 v{T+1}, 7, v0
          v_lshrrev_b32 v{T+2}, 4, v0
          v_xor_b32 v{T+1}, v{T+1}, v{T+2}
          v_lshl_add_u32 v{vXa}, v{T+1}, 4, v{T}
          v_xor_b32 v{vXb}, 64, v{vXa}""")
    for n in range(3):
        a(f"""v_add_u32 v{T}, {64*n}, v0
              v_mul_u32_u24 v{T+1}, 5462, v{T}
              v_lshrrev_b32 v{T+1}, 16, v{T+1}
              v_mul_u32_u24 v{T+2}, 12, v{T+1}
              v_sub_u32 v{T}, v{T}, v{T+2}
              v_mul_u32_u24 v{T+1}, 3072, v{T+1}
              v_lshrrev_b32 v{T+2}, 2, v{T}
              v_lshl_add_u32 v{T+1}, v{T+2}, 10, v{T+1}
              v_and_b32 v{T}, 3, v{T}
              v_lshl_add_u32 v{vWd+n}, v{T}, 4, v{T+1}""")
    a("s_waitcnt lgkmcnt(0)")
    srd(a, 8, 4, 2048*512*2)
    srd(a, 12, 6, 512*1536*2)
    srd(a, 16, 28, WS_BYTES)
    def dma_w(c):
        for n in range(3):
            a(f"s_add_u32 m0, s27, {c*12288 + n*1024}")
            a("s_nop 0")
            a.vmem(f"buffer_load_dwordx4 v{vWd+n}, s[12:15], s{48+c} offen lds", ("w", c))
    def dma_x(c):
        for n in range(4):
            a(f"s_add_u32 m0, s26, {(c&3)*4096 + n*1024}")
            a(f"s_add_u32 s33, s{40+c}, {n*8192}")
            a.vmem(f"buffer_load_dwordx4 v{vXa if n%2==0 else vXb}, s[8:11], s33 offen lds", ("x", c))
    for c in range(4):
        dma_w(c); dma_x(c)
    for c in range(4, 8):
        dma_w(c)
    a(f"""v_and_b32 v{T}, 31, v0
          v_lshrrev_b32 v{T+1}, 1, v{T}
          v_and_b32 v{T+1}, 7, v{T+1}
          v_lshrrev_b32 v{T+2}, 5, v0
          v_xor_b32 v{T+1}, v{T+1}, v{T+2}
          v_lshlrev_b32 v{T+1}, 4, v{T+1}
          v_lshl_add_u32 v{T}, v{T}, 7, s26""")
    for s in range(4):
        a(f"v_xor_b32 v{T+3}, {32*s}, v{T+1}")
        a(f"v_add_u32 v{vXr+s}, v{T}, v{T+3}")
    a(f"""v_lshlrev_b32 v{T}, 3, v{T+2}
          v_bfe_u32 v{T+1}, v0, 2, 2
          v_add_u32 v{T}, v{T}, v{T+1}
          v_mul_u32_u24 v{T}, 192, v{T}
          v_bfe_u32 v{T+1}, v0, 4, 1
          v_lshl_add_u32 v{T}, v{T+1}, 5, v{T}
          v_and_b32 v{T+1}, 3, v0
          v_lshl_add_u32 v{T}, v{T+1}, 3, v{T}
          v_add_u32 v{vWr}, 0x10000, v{T}
          v_add_u32 v{vWr+1}, 0x1c000, v{T}""")
    ACC = [32, 48, 64]; XF = [80, 84]; WF = [88, 100]
    def reads(t):
        c, s, b = t >> 2, t & 3, t & 1
        a.lds(f"ds_read_b128 {vr(XF[b],4)}, v{vXr+s} offset:{(c&3)*4096}", ("r", t))
        for sec in range(3):
            for q in range(2):
                off = (c & 3)*12288 + (16*s + 4*q)*192 + 64*sec
                a.lds(f"ds_read_b64_tr_b16 {vr(WF[b]+4*sec+2*q,2)}, v{vWr+(c>>2)} offset:{off}", ("r", t))
    def chunk_ready(c):
        a.wait_vm([("w", c), ("x", c)])
        a("s_barrier")
    stamp(a, 1)
    chunk_ready(0)
    stamp(a, 2)
    reads(0)
    for t in range(32):
        c, s, b = t >> 2, t & 3, t & 1
        if t + 1 < 32:
            if s == 3: chunk_ready(c + 1)
            reads(t + 1)
        a.wait_lg(("r", t))
        cin = lambda i: ("0" if t == 0 else vr(ACC[i], 16))
        a(f"{MFMA} {vr(ACC[0],16)}, {vr(WF[b],4)}, {vr(XF[b],4)}, {cin(0)}")
        a(f"{MFMA} {vr(ACC[1],16)}, {vr(WF[b]+4,4)}, {vr(XF[b],4)}, {cin(1)}")
        a(f"{MFMA} {vr(ACC[2],16)}, {vr(XF[b],4)}, {vr(WF[b]+8,4)}, {cin(2)}")
        if s == 3 and c + 4 < 8: dma_x(c + 4)
        if t == 15: stamp(a, 3)
    stamp(a, 4)
    a(f"""v_lshlrev_b32 v2, 4, v0
          v_bfe_u32 v3, v0, 4, 1
          v_lshlrev_b32 v3, 16, v3
          v_lshrrev_b32 v4, 5, v0
          v_lshl_add_u32 v3, v4, 8, v3
          v_and_b32 v4, 15, v0
          v_lshl_add_u32 v3, v4, 4, v3
          s_lshl_b32 s33, s22, 17
          s_lshl_b32 s34, s35, 10
          s_add_u32 s33, s33, s34
          s_add_u32 s36, s33, {QF}
          s_add_u32 s37, s33, {QF+65536}
          s_add_u32 s38, s33, {KF}
          s_add_u32 s39, s33, {KF+65536}
          s_add_u32 s34, s33, {VF}""")
    sc = f2h(0.25*LOG2E)
    for r in range(16): a(f"v_mul_f32 v{ACC[0]+r}, {sc}, v{ACC[0]+r}")
    P = 80
    for j in range(8): a(f"v_cvt_pk_bf16_f32 v{P+j}, v{ACC[0]+2*j}, v{ACC[0]+2*j+1}")
    a(f"buffer_store_dwordx4 {vr(P,4)}, v2, s[16:19], s36 offen")
    a(f"buffer_store_dwordx4 {vr(P+4,4)}, v2, s[16:19], s37 offen")
    for j in range(8): a(f"v_cvt_pk_bf16_f32 v{P+8+j}, v{ACC[1]+2*j}, v{ACC[1]+2*j+1}")
    a(f"buffer_store_dwordx4 {vr(P+8,4)}, v2, s[16:19], s38 offen")
    a(f"buffer_store_dwordx4 {vr(P+12,4)}, v2, s[16:19], s39 offen")
    for j in range(8): a(f"v_cvt_pk_bf16_f32 v{P+16+j}, v{ACC[2]+2*j}, v{ACC[2]+2*j+1}")
    a(f"buffer_store_dwordx4 {vr(P+16,4)}, v3, s[16:19], s34 offen")
    a(f"buffer_store_dwordx4 {vr(P+20,4)}, v3, s[16:19], s34 offen offset:512")
    stamp(a, 5)
    if STAMP:
        a("s_waitcnt vmcnt(0)")
        stamp(a, 6)
        stamp_flush(a, 7, 16, 0, vt=120)
        a("s_mov_b64 exec, -1")
    a(f"""s_cmp_gt_u32 s20, 1
          s_cbranch_scc1 Lq_end
          s_bfe_u32 s33, s2, 0x10003
          s_sub_u32 s33, 0, s33
          s_lshl_b32 s34, s2, 9
          s_add_u32 s34, s34, {EB}
          s_lshl_b32 s36, s2, 4
          s_add_u32 s36, s36, {FH}
          s_cmp_eq_u32 s20, 0
          s_cselect_b32 s33, s33, 0
          s_cselect_b32 s34, s34, s36
          s_cselect_b32 exec_lo, -1, 1
          s_mov_b32 exec_hi, 0
          v_mov_b32 v8, s33
          v_mov_b32 v9, s33
          v_mov_b32 v10, s33
          v_mov_b32 v11, s33
          buffer_store_dwordx4 v[8:11], v2, s[16:19], s34 offen""")
    a.label("Lq_end")
    a("s_endpgm")
    return a.text(), 128

KR, VR_, S0, S1, PR, OR_, QA, QB = 8, 40, 104, 120, 136, 144, 160, 164
RED = 0
ONES = "0x3f803f80"
def gen_attn_body(a, pfx):
    a("""s_and_b32 s30, s2, 7
         s_lshr_b32 s31, s2, 3
         s_lshl_b32 s21, s30, 2
         s_lshr_b32 s33, s31, 3
         s_add_u32 s21, s21, s33
         s_and_b32 s22, s31, 7""")
    a(f"""s_lshl_b32 s33, s21, 16
          s_lshl_b32 s34, s20, 13
          s_add_u32 s34, s34, s33
          s_add_u32 s24, s34, {KF}
          s_add_u32 s25, s34, {KF+4096}
          s_add_u32 s26, s34, {VF}
          s_add_u32 s27, s34, {VF+4096}
          s_lshl_b32 s34, s22, 13
          s_add_u32 s28, s34, s33
          s_add_u32 s28, s28, {QF}""")
    a("""v_lshlrev_b32 v1, 4, v0
         v_lshrrev_b32 v2, 5, v0
         v_lshlrev_b32 v2, 8, v2
         v_and_b32 v7, 15, v0
         v_lshl_add_u32 v2, v7, 4, v2
         s_mul_i32 s33, s20, 1280
         v_add_u32 v3, s33, v1
         v_lshl_add_u32 v5, v0, 2, s33""")
    def ldk(kt):
        a.vmem(f"buffer_load_dwordx4 {vr(KR+4*kt,4)}, v1, s[8:11], s{24+(kt>>2)} offen offset:{(kt&3)*1024}", ("K", kt))
    def ldv(kt):
        a("s_mov_b64 exec, s[36:37]")
        for m in range(2):
            a.vmem(f"buffer_load_dwordx4 {vr(VR_+8*kt+4*m,4)}, v2, s[8:11], s{26+(kt>>2)} offen offset:{(kt&3)*1024+m*512}", ("V", kt, m))
        a("s_mov_b64 exec, -1")
    def ones(kt):
        for r in range(8): a(f"v_mov_b32 v{VR_+8*kt+r}, v4")
    a("s_mov_b32 s36, 0xffff")
    a("s_mov_b32 s37, 0xffff")
    a("s_setprio 1")
    a.vmem(f"buffer_load_dwordx4 {vr(QA,4)}, v1, s[8:11], s28 offen", ("Q", 0))
    ldk(0); ldk(1)
    a(f"v_mov_b32 v4, {ONES}")
    ones(0); ldv(0)
    for kt in range(1, 8): ones(kt)
    ldk(2); ldv(1)
    stamp(a, 1)
    SB = [S0, S1]
    def step(i, Qcur, Qnext, first, drain_off, last_body):
        S = SB[i & 1]; Sn = SB[(i + 1) & 1]
        E = lambda r: a(f"v_exp_f32 v{S+r}, v{S+r}")
        C = lambda j: a(f"v_cvt_pk_bf16_f32 v{PR+j}, v{S+2*j}, v{S+2*j+1}")
        def pv(kt, m, zero=False):
            a.wait_vm(("V", kt, m))
            a(f"{MFMA} {vr(OR_,16)}, {vr(VR_+8*kt+4*m,4)}, {vr(PR+4*m,4)}, {'0' if zero else vr(OR_,16)}")
        if i < 7:
            a.wait_vm(("K", i + 1))
            a(f"{MFMA} {vr(Sn,16)}, {vr(KR+4*(i+1),4)}, {vr(Qcur,4)}, 0")
        elif not last_body:
            a.wait_vm(("Q", 1))
            a(f"{MFMA} {vr(Sn,16)}, {vr(KR,4)}, {vr(Qnext,4)}, 0")
        if first:
            if i + 3 < 8: ldk(i + 3)
            if i + 2 < 8: ldv(i + 2)
        if i == (5 if first else 0) and not last_body:
            a("s_add_u32 s28, s28, 1024")
            a.vmem(f"buffer_load_dwordx4 {vr(Qnext,4)}, v1, s[8:11], s28 offen", ("Q", 1))
        E(0); E(1); E(2); E(3); C(0); E(4); E(5)
        if not (i == 0 and first): pv((i - 1) & 7, 1)
        C(1); E(6); E(7); C(2); E(8); C(3); E(9); E(10)
        if i != 0: pv(i, 0)
        E(11); C(4); E(12); E(13); C(5); E(14)
        if i == 0:
            if not first: drain(S, drain_off)
            pv(0, 0, zero=True)
        E(15); C(6); C(7)
    def drain(T, off):
        for j in range(4): a(f"v_cvt_pk_bf16_f32 v{T+j}, v{OR_+2*j}, v{OR_+2*j+1}")
        a(f"ds_write_b32 v5, v{OR_+8} offset:{RED + off + 1024}")
        a(f"ds_write_b128 v3, {vr(T,4)} offset:{RED + off}")
    def body(j, Qcur, Qnext, first=False, last=False, drain_off=0):
        for i in range(8): step(i, Qcur, Qnext, first, drain_off, last)
    a.wait_vm([("Q", 0), ("K", 0)])
    a(f"{MFMA} {vr(S0,16)}, {vr(KR,4)}, {vr(QA,4)}, 0")
    a("s_nop 7")
    a("s_nop 3")
    stamp(a, 2)
    body(0, QA, QB, first=True)
    a.wait_vm0()
    stamp(a, 3)
    a("s_mov_b32 s29, 3")
    a.label(pfx + "_loop")
    body(1, QB, QA, drain_off=0)
    body(2, QA, QB, drain_off=10240)
    a("v_add_u32 v3, 20480, v3")
    a("v_add_u32 v5, 20480, v5")
    a("s_sub_u32 s29, s29, 1")
    a("s_cmp_lg_u32 s29, 0")
    a(f"s_cbranch_scc1 {pfx}_loop")
    stamp(a, 4)
    a("s_setprio 0")
    body(7, QB, QA, last=True, drain_off=0)
    stamp(a, 5)
    a("s_nop 1")
    a(f"{MFMA} {vr(OR_,16)}, {vr(VR_+8*7+4,4)}, {vr(PR+4,4)}, {vr(OR_,16)}")
    a("s_lshl_b32 s33, s22, 3")
    a("s_add_u32 s33, s33, s20")
    a("s_lshl_b32 s34, s33, 15")
    a("s_lshl_b32 s35, s21, 10")
    a("s_add_u32 s34, s34, s35")
    a(f"s_add_u32 s34, s34, {OF}")
    a("s_nop 5")
    drain(S0, 10240)
    a("s_mul_i32 s35, s20, 10240")
    a("v_add_u32 v3, s35, v1")
    a("v_lshl_add_u32 v5, v0, 2, s35")
    a("s_waitcnt lgkmcnt(0)")
    a("s_barrier")
    stamp(a, 6)
    T = KR
    for w in range(8):
        a(f"ds_read_b128 {vr(T+4*w,4)}, v3 offset:{RED + w*1280}")
        a(f"ds_read_b32 v{S0+w}, v5 offset:{RED + w*1280 + 1024}")
    for w in range(8):
        a(f"s_waitcnt lgkmcnt({min(15, 14-2*w)})")
        for j in range(4):
            if w == 0:
                a(f"v_lshlrev_b32 v{OR_+2*j}, 16, v{T+j}")
                a(f"v_and_b32 v{OR_+2*j+1}, 0xffff0000, v{T+j}")
            else:
                a(f"v_lshlrev_b32 v{S1+2*j}, 16, v{T+4*w+j}")
                a(f"v_and_b32 v{S1+2*j+1}, 0xffff0000, v{T+4*w+j}")
        if w == 0: a(f"v_mov_b32 v{OR_+8}, v{S0}")
        else:
            for r in range(8): a(f"v_add_f32 v{OR_+r}, v{OR_+r}, v{S1+r}")
            a(f"v_add_f32 v{OR_+8}, v{OR_+8}, v{S0+w}")
    a(f"""v_max3_f32 v7, abs(v{OR_}), abs(v{OR_+1}), abs(v{OR_+2})
          v_max3_f32 v7, abs(v{OR_+3}), abs(v{OR_+4}), v7
          v_max3_f32 v7, abs(v{OR_+5}), abs(v{OR_+6}), v7
          v_max_f32 v7, abs(v{OR_+7}), v7
          v_add_f32 v5, v{OR_}, v{OR_+1}
          v_add_f32 v5, v5, v{OR_+2}
          v_add_f32 v5, v5, v{OR_+3}
          v_add_f32 v5, v5, v{OR_+4}
          v_add_f32 v5, v5, v{OR_+5}
          v_add_f32 v5, v5, v{OR_+6}
          v_add_f32 v5, v5, v{OR_+7}
          v_cmp_o_f32 s[38:39], v5, v5
          v_cmp_gt_f32 vcc, 0x7e800000, v7
          s_and_b64 s[38:39], s[38:39], vcc
          v_cmp_le_f32 vcc, 0x1f800000, v{OR_+8}
          s_and_b64 s[38:39], s[38:39], vcc
          v_cmp_ge_f32 vcc, 0x5f800000, v{OR_+8}
          s_and_b64 s[38:39], s[38:39], vcc
          s_cmp_eq_u64 s[38:39], -1
          s_cbranch_scc0 {pfx}_slow""")
    a.label(pfx + "_fin")
    a(f"v_rcp_f32 v7, v{OR_+8}")
    a("s_nop 0")
    for r in range(8): a(f"v_mul_f32 v{OR_+r}, v7, v{OR_+r}")
    for j in range(4): a(f"v_cvt_pk_bf16_f32 v{PR+j}, v{OR_+2*j}, v{OR_+2*j+1}")
    a(f"buffer_store_dwordx4 {vr(PR,4)}, v1, s[8:11], s34 offen")
    stamp(a, 7)
    stamp_flush(a, 8, 8, 1)
    a("s_endpgm")
    a.label(pfx + "_slow")
    a(f"""s_lshl_b32 s35, s21, 16
          s_lshl_b32 s33, s33, 10
          s_add_u32 s33, s33, s35
          s_add_u32 s33, s33, {QF}
          buffer_load_dwordx4 {vr(QA,4)}, v1, s[8:11], s33 offen
          s_add_u32 s24, s35, {KF}
          s_add_u32 s26, s35, {VF}
          v_mov_b32 v7, 0xff800000
          s_mov_b32 s29, 0""")
    a.label(pfx + "_mx")
    a(f"""s_add_u32 s33, s24, s29
          buffer_load_dwordx4 {vr(KR,4)}, v1, s[8:11], s33 offen
          s_waitcnt vmcnt(0)
          {MFMA} {vr(S0,16)}, {vr(KR,4)}, {vr(QA,4)}, 0
          s_nop 15""")
    for j in range(8): a(f"v_max3_f32 v7, v{S0+2*j}, v{S0+2*j+1}, v7")
    a(f"""s_add_u32 s29, s29, 1024
          s_cmp_lt_u32 s29, 65536
          s_cbranch_scc1 {pfx}_mx
          v_mov_b32 v5, v7
          s_nop 1
          v_permlane32_swap_b32 v5, v7
          s_nop 1
          v_max_f32 v7, v5, v7
          v_sub_f32 v7, 0, v7""")
    for r in range(16): a(f"v_mov_b32 v{S1+r}, v7")
    for r in range(16): a(f"v_mov_b32 v{OR_+r}, 0")
    a("s_mov_b32 s29, 0")
    a.label(pfx + "_sl")
    a(f"""s_add_u32 s33, s24, s29
          buffer_load_dwordx4 {vr(KR,4)}, v1, s[8:11], s33 offen
          s_add_u32 s33, s26, s29
          s_mov_b64 exec, s[36:37]
          buffer_load_dwordx4 {vr(VR_,4)}, v2, s[8:11], s33 offen
          buffer_load_dwordx4 {vr(VR_+4,4)}, v2, s[8:11], s33 offen offset:512
          s_mov_b64 exec, -1
          s_waitcnt vmcnt(0)
          {MFMA} {vr(S0,16)}, {vr(KR,4)}, {vr(QA,4)}, {vr(S1,16)}
          s_nop 15""")
    for r in range(16): a(f"v_exp_f32 v{S0+r}, v{S0+r}")
    a("s_nop 0")
    for j in range(8): a(f"v_cvt_pk_bf16_f32 v{PR+j}, v{S0+2*j}, v{S0+2*j+1}")
    a(f"""s_nop 1
          {MFMA} {vr(OR_,16)}, {vr(VR_,4)}, {vr(PR,4)}, {vr(OR_,16)}
          {MFMA} {vr(OR_,16)}, {vr(VR_+4,4)}, {vr(PR+4,4)}, {vr(OR_,16)}
          s_add_u32 s29, s29, 1024
          s_cmp_lt_u32 s29, 65536
          s_cbranch_scc1 {pfx}_sl
          s_nop 15
          s_branch {pfx}_fin""")

def gen_attn():
    a = Asm()
    a("s_cmp_ge_u32 s2, 256")
    a("s_cbranch_scc1 La_end")
    stamp(a, 0)
    a(f"s_load_dwordx2 s[4:5], s[0:1], {WS}")
    wave_id(a, 20)
    a("s_waitcnt lgkmcnt(0)")
    srd(a, 8, 4, WS_BYTES)
    gen_attn_body(a, "La")
    a.label("La_end")
    a("s_endpgm")
    return a.text(), 168

def reduce4_and_pick(a, ACC, vL, lds_base_sgpr_stride, region, sync, wave=20):
    stride = lds_base_sgpr_stride
    a(f"s_mul_i32 s33, s{wave}, {stride}")
    a(f"s_add_u32 s33, s33, {region}")
    a(f"v_add_u32 v4, s33, v{vL}")
    for t in range(4):
        for q in range(4):
            a(f"ds_write_b128 v4, {vr(ACC[t]+4*q,4)} offset:{t*4096+q*1024}")
    a("s_waitcnt lgkmcnt(0)")
    sync()
    a(f"s_lshl_b32 s33, s{wave}, 12")
    a(f"s_add_u32 s33, s33, {region}")
    a(f"v_add_u32 v4, s33, v{vL}")
    if 3*stride + 3072 > 65535:
        a(f"v_add_u32 v5, {2*stride}, v4")
    for w in range(4):
        for q in range(4):
            if 3*stride + 3072 > 65535 and w >= 2:
                a(f"ds_read_b128 {vr(ACC[w]+4*q,4)}, v5 offset:{(w-2)*stride+q*1024}")
            else:
                a(f"ds_read_b128 {vr(ACC[w]+4*q,4)}, v4 offset:{w*stride+q*1024}")
        if w == 1: pass
    a("s_waitcnt lgkmcnt(8)")
    for r in range(16): a(f"v_add_f32 v{ACC[0]+r}, v{ACC[0]+r}, v{ACC[1]+r}")
    a("s_waitcnt lgkmcnt(0)")
    for r in range(16): a(f"v_add_f32 v{ACC[2]+r}, v{ACC[2]+r}, v{ACC[3]+r}")
    for r in range(16): a(f"v_add_f32 v{ACC[0]+r}, v{ACC[0]+r}, v{ACC[2]+r}")

def gen_wo():
    a = Asm()
    a("s_cmp_ge_u32 s2, 256")
    a("s_cbranch_scc1 Lo_end")
    stamp(a, 0)
    a(f"s_load_dwordx4 s[4:7], s[0:1], {B_WO}")
    a(f"s_load_dwordx2 s[28:29], s[0:1], {WS}")
    wave_id(a, 20)
    a("""s_and_b32 s30, s2, 7
         s_lshr_b32 s31, s2, 3
         s_lshl_b32 s21, s30, 2
         s_and_b32 s33, s31, 3
         s_add_u32 s21, s21, s33
         s_lshr_b32 s22, s31, 2""")
    a(f"""s_lshl_b32 s24, s21, 16
          s_lshl_b32 s33, s20, 13
          s_add_u32 s24, s24, s33
          s_add_u32 s24, s24, {OF}
          s_add_u32 s25, s24, 4096
          s_add_u32 s26, s24, 32768
          s_add_u32 s27, s24, 36864
          s_lshl_b32 s35, s20, 17
          s_lshl_b32 s33, s22, 7
          s_add_u32 s35, s35, s33
          s_lshl_b32 s36, s20, 14""")
    a("""v_lshlrev_b32 v1, 4, v0
         v_lshrrev_b32 v2, 3, v0
         v_lshlrev_b32 v2, 10, v2
         v_and_b32 v3, 7, v0
         v_bfe_u32 v4, v0, 4, 1
         v_lshlrev_b32 v4, 2, v4
         v_xor_b32 v3, v3, v4
         v_lshl_add_u32 v2, v3, 4, v2""")
    a("s_waitcnt lgkmcnt(0)")
    srd(a, 8, 4, 512*512*2)
    srd(a, 12, 6, 2048*1024*4)
    srd(a, 16, 28, WS_BYTES)
    OFR = 96
    for hh in range(8):
        for n in range(2):
            a(f"s_add_u32 m0, s36, {(2*hh+n)*1024}")
            a(f"s_add_u32 s33, s35, {(2*hh+n)*8192}")
            a.vmem(f"buffer_load_dwordx4 v2, s[8:11], s33 offen lds", ("h", hh))
        for t in range(2):
            a.vmem(f"buffer_load_dwordx4 {vr(OFR+8*hh+4*t,4)}, v1, s[16:19], s{24+2*t+(hh>>2)} offen offset:{(hh&3)*1024}", ("h", hh))
    a("""v_lshrrev_b32 v5, 5, v0
         v_lshlrev_b32 v5, 2, v5
         v_bfe_u32 v6, v0, 2, 2
         v_add_u32 v5, v5, v6
         v_lshlrev_b32 v5, 7, v5
         v_bfe_u32 v6, v0, 3, 1
         v_lshl_add_u32 v5, v6, 6, v5
         v_bfe_u32 v6, v0, 4, 1
         v_lshl_add_u32 v5, v6, 5, v5
         v_and_b32 v6, 3, v0
         v_lshl_add_u32 v5, v6, 3, v5
         v_add_u32 v6, s36, v5
         v_xor_b32 v7, 64, v6""")
    ACC = [32, 48, 64, 80]; WFR = [8, 16]
    def reads(hh):
        a.wait_vm(("h", hh))
        for nb in range(2):
            for q in range(2):
                a.lds(f"ds_read_b64_tr_b16 {vr(WFR[hh&1]+4*nb+2*q,2)}, v{6+nb} offset:{hh*2048+q*1024}", ("r", hh))
    stamp(a, 1)
    reads(0)
    stamp(a, 2)
    for hh in range(8):
        if hh + 1 < 8: reads(hh + 1)
        a.wait_lg(("r", hh))
        for t in range(2):
            for nb in range(2):
                A = ACC[2*t+nb]
                a(f"{MFMA} {vr(A,16)}, {vr(OFR+8*hh+4*t,4)}, {vr(WFR[hh&1]+4*nb,4)}, {'0' if hh==0 else vr(A,16)}")
    a("""s_lshr_b32 s33, s20, 1
         s_lshl_b32 s34, s21, 1
         s_add_u32 s33, s33, s34
         s_lshl_b32 s33, s33, 17
         s_and_b32 s34, s20, 1
         s_lshl_b32 s37, s22, 1
         s_add_u32 s34, s34, s37
         s_lshl_b32 s34, s34, 7
         s_add_u32 s33, s33, s34
         s_add_u32 s38, s33, 2048
         v_lshrrev_b32 v2, 5, v0
         v_lshlrev_b32 v2, 14, v2
         v_and_b32 v3, 31, v0
         v_lshl_add_u32 v2, v3, 2, v2""")
    stamp(a, 3)
    reduce4_and_pick(a, ACC, 1, 16384, 0, lambda: a("s_barrier"))
    stamp(a, 4)
    for r in range(16):
        row = 8*(r >> 2) + (r & 3)
        a(f"s_add_u32 s33, s38, {row*4096}")
        a(f"buffer_store_dword v{ACC[0]+r}, v2, s[12:15], s33 offen")
    stamp(a, 5)
    if STAMP:
        a("s_waitcnt vmcnt(0)")
        stamp(a, 6)
        stamp_flush(a, 7, 16, 2)
    a.label("Lo_end")
    a("s_endpgm")
    return a.text(), 160

SSMB = 81920
SREG = 18432
EXB = SSMB + 4*SREG
CNT = EXB + 3840
LDS_TOTAL = CNT + 64
SPIN = 1 << 16
def ssm_lds_init(a):
    a(f"""v_lshlrev_b32 v2, 4, v0
          v_mov_b32 v4, 0
          v_mov_b32 v5, 0
          v_mov_b32 v6, 0
          v_mov_b32 v7, 0
          v_add_u32 v2, {EXB}, v2
          ds_write_b128 v2, v[4:7]
          ds_write_b128 v2, v[4:7] offset:768
          v_mov_b32 v2, {CNT}
          ds_write_b128 v2, v[4:7]""")

def lds_sync(a, idx, lbl, vA=14, vT=15):
    a(f"""v_mov_b32 v{vA}, {CNT + 4*idx}
          v_mov_b32 v{vT}, 1
          s_mov_b64 exec, 1
          ds_add_u32 v{vA}, v{vT}
          s_mov_b64 exec, -1
          s_mov_b32 s39, {SPIN}""")
    a.label(lbl)
    a(f"""ds_read_b32 v{vT}, v{vA}
          s_sub_u32 s39, s39, 1
          s_cbranch_scc1 {lbl}_x
          s_waitcnt lgkmcnt(0)
          v_readfirstlane_b32 s33, v{vT}
          s_cmp_ge_u32 s33, 4
          s_cbranch_scc0 {lbl}""")
    a.label(lbl + "_x")
    a("s_waitcnt lgkmcnt(0)")
    a.lg = []

def gen_ssm_body(a, pfx):
    a(f"s_load_dwordx8 s[52:59], s[0:1], {A_X}")
    a(f"s_load_dwordx2 s[60:61], s[0:1], {A_BIM}")
    a(f"s_load_dwordx2 s[62:63], s[0:1], {A_LDT}")
    a("""s_setprio 3
         s_and_b32 s30, s2, 7
         s_lshr_b32 s31, s2, 3
         s_lshr_b32 s21, s30, 1
         s_lshl_b32 s21, s21, 2
         s_and_b32 s33, s31, 3
         s_add_u32 s21, s21, s33
         s_and_b32 s22, s30, 1
         s_lshl_b32 s22, s22, 3
         s_lshr_b32 s34, s31, 2
         s_add_u32 s22, s22, s34
         s_lshl_b32 s23, s34, 1
         s_lshl_b32 s33, s33, 2
         s_add_u32 s23, s23, s33""")
    a(f"""s_lshl_b32 s24, s21, 2
          s_add_u32 s24, s24, s20
          s_mov_b32 s29, s24
          s_lshl_b32 s24, s24, 15
          s_lshl_b32 s25, s22, 15
          s_mul_i32 s26, s20, {SREG}
          s_add_u32 s26, s26, {SSMB}""")
    vX, vB, vR = 2, 3, 4
    a(f"""v_lshlrev_b32 v1, 4, v0
          v_and_b32 v8, 3, v0
          v_bfe_u32 v9, v0, 4, 2
          v_xor_b32 v8, v8, v9
          v_lshlrev_b32 v8, 4, v8
          v_lshrrev_b32 v9, 2, v0
          v_lshl_add_u32 v{vB}, v9, 10, v8
          v_bfe_u32 v9, v0, 2, 2
          v_bfe_u32 v10, v0, 4, 1
          v_lshl_add_u32 v9, v10, 4, v9
          v_bfe_u32 v10, v0, 5, 1
          v_lshl_add_u32 v9, v10, 2, v9
          v_lshl_add_u32 v{vX}, v9, 10, v8
          v_and_b32 v8, 31, v0
          v_bfe_u32 v9, v0, 2, 2
          v_lshrrev_b32 v10, 5, v0
          v_xor_b32 v9, v9, v10
          v_lshlrev_b32 v9, 4, v9
          v_lshl_add_u32 v9, v8, 6, v9
          v_add_u32 v{vR}, s26, v9
          v_xor_b32 v9, 32, v9
          v_add_u32 v{vR+1}, s26, v9
          s_lshl_b32 s33, s22, 6
          v_lshl_add_u32 v8, v8, 1, s33""")
    a("s_waitcnt lgkmcnt(0)")
    srd(a, 12, 52, 2048*512*2)
    srd(a, 16, 58, 512*512*2)
    srd(a, 40, 60, 512*512*2)
    PA, PB_, PD = 6, 7, 9
    a.vmem(f"global_load_ushort v{PA}, v8, s[54:55]", "par")
    a.vmem(f"global_load_ushort v{PB_}, v8, s[56:57]", "par")
    a.vmem(f"global_load_ushort v{PD}, v8, s[62:63]", "par")
    def dma1(c):
        base = (c % 3)*6144
        a(f"s_add_u32 s33, s23, {c}")
        a("s_and_b32 s33, s33, 15")
        a("s_lshl_b32 s33, s33, 6")
        a("s_add_u32 s34, s33, s24")
        a("s_add_u32 s35, s33, s25")
        for n in range(2):
            a(f"s_add_u32 m0, s26, {base + n*1024}")
            a(f"s_add_u32 s33, s34, {n*8192}")
            a.vmem(f"buffer_load_dwordx4 v{vX}, s[12:15], s33 offen lds", ("a", c))
        for mat in range(2):
            for n in range(2):
                a(f"s_add_u32 m0, s26, {base + 2048 + mat*2048 + n*1024}")
                a(f"s_add_u32 s33, s35, {n*16384}")
                a.vmem(f"buffer_load_dwordx4 v{vB}, s[{16+24*mat}:{19+24*mat}], s33 offen lds", ("a", c))
    for c in range(3): dma1(c)
    LR, LI, NLI, L16R, L16I, L128R, L128I, LKR, LKI, LSR, LSI, SGR, NSI, NSR, ZR, ZI = range(128, 144)
    a.wait_vm("par")
    a(f"""v_lshlrev_b32 v{PA}, 16, v{PA}
          v_lshlrev_b32 v{PB_}, 16, v{PB_}
          v_lshlrev_b32 v{PD}, 16, v{PD}
          v_mul_f32 v{PD}, {f2h(LOG2E)}, v{PD}
          v_exp_f32 v{PD}, v{PD}
          s_nop 0
          v_cvt_pk_bf16_f32 v{PD}, v{PD}, v{PD}
          v_and_b32 v{PD}, 0xffff0000, v{PD}
          v_mul_f32 v{ZR}, v{PD}, v{PA}
          v_mul_f32 v{ZI}, v{PD}, v{PB_}
          v_mul_f32 v{ZR}, {f2h(LOG2E)}, v{ZR}
          v_mul_f32 v{ZI}, {f2h(0.15915494309189535)}, v{ZI}""")
    def cpow(dr, di, n):
        a(f"""v_mul_f32 v10, {n}, v{ZR}
              v_mul_f32 v11, {n}, v{ZI}
              v_exp_f32 v10, v10
              v_fract_f32 v11, v11
              v_cos_f32 v{dr}, v11
              v_sin_f32 v{di}, v11
              s_nop 0
              v_mul_f32 v{dr}, v10, v{dr}
              v_mul_f32 v{di}, v10, v{di}""")
    cpow(LR, LI, "1.0"); cpow(L16R, L16I, f2h(16.0)); cpow(L128R, L128I, f2h(128.0)); cpow(LKR, LKI, f2h(1024.0))
    a(f"""v_lshrrev_b32 v12, 5, v0
          s_lshl_b32 s33, s20, 1
          v_add_u32 v12, s33, v12
          v_lshlrev_b32 v13, 4, v12
          v_cvt_f32_u32 v13, v13""")
    cpow(LSR, LSI, "v13")
    a(f"""v_sub_f32 v{NLI}, 0, v{LI}
          v_mul_f32 v10, v{PA}, v{PA}
          v_fmac_f32 v10, v{PB_}, v{PB_}
          v_rcp_f32 v10, v10
          v_subrev_f32 v11, 1.0, v{LR}
          v_add_f32 v10, v10, v10
          v_mul_f32 v{SGR}, v11, v{PA}
          v_fmac_f32 v{SGR}, v{LI}, v{PB_}
          v_mul_f32 v{NSI}, v11, v{PB_}
          v_fmac_f32 v{NSI}, v{NLI}, v{PA}
          v_mul_f32 v{SGR}, v10, v{SGR}
          v_mul_f32 v{NSI}, v10, v{NSI}
          v_sub_f32 v{NSR}, 0, v{SGR}""")
    stamp(a, 1)
    UR, UI = 16, 32
    FR = [48, 72]
    def reads1(c):
        a.wait_vm(("a", c))
        for mat in range(3):
            for s in range(2):
                a.lds(f"ds_read_b128 {vr(FR[c&1]+8*mat+4*s,4)}, v{vR+s} offset:{(c%3)*6144 + mat*2048}", ("r", c))
    reads1(0)
    for c in range(16):
        if c + 1 < 16: reads1(c + 1)
        a.wait_lg(("r", c))
        if c + 3 < 16: dma1(c + 3)
        F = FR[c & 1]
        for s in range(2):
            z = c == 0 and s == 0
            a(f"{MFMA} {vr(UR,16)}, {vr(F+4*s,4)}, {vr(F+8+4*s,4)}, {'0' if z else vr(UR,16)}")
            a(f"{MFMA} {vr(UI,16)}, {vr(F+4*s,4)}, {vr(F+16+4*s,4)}, {'0' if z else vr(UI,16)}")
    stamp(a, 2)
    a(f"s_load_dwordx4 s[52:55], s[0:1], {A_CRE}")
    a(f"s_load_dwordx2 s[56:57], s[0:1], {A_DSK}")
    a(f"s_load_dwordx2 s[58:59], s[0:1], {OUT}")
    a("""s_lshl_b32 s27, s30, 2
         s_and_b32 s33, s31, 3
         s_add_u32 s27, s27, s33
         s_lshr_b32 s28, s31, 2
         s_lshl_b32 s36, s28, 16
         s_lshl_b32 s33, s20, 8
         s_add_u32 s36, s36, s33""")
    a("s_waitcnt lgkmcnt(0)")
    srd(a, 16, 52, 512*512*2)
    srd(a, 40, 54, 512*512*2)
    srd(a, 48, 58, 2048*1024*4)
    def dma2(g):
        pbi, mat = g >> 1, g & 1
        for n in range(4):
            a(f"s_add_u32 m0, s26, {(g & 3)*4096 + n*1024}")
            a(f"s_add_u32 s33, s36, {n*16384 + pbi*64}")
            a.vmem(f"buffer_load_dwordx4 v{vB}, s[{16+24*mat}:{19+24*mat}], s33 offen lds", ("c", g))
    for g in range(4): dma2(g)
    E = [(48, 49), (50, 51)]
    pr, pi = UR, UI
    for r in range(1, 16):
        er, ei = E[r & 1]
        a(f"v_fma_f32 v{er}, v{LR}, v{pr}, v{UR+r}")
        a(f"v_fma_f32 v{ei}, v{LR}, v{pi}, v{UI+r}")
        a(f"v_fmac_f32 v{er}, v{NLI}, v{pi}")
        a(f"v_fmac_f32 v{ei}, v{LI}, v{pr}")
        pr, pi = er, ei
    a(f"""s_lshl_b32 s33, s20, 9
          s_add_u32 s33, s33, {EXB + 7*256}
          v_lshl_add_u32 v10, v0, 3, s33
          ds_write_b64 v10, v[50:51]
          v_and_b32 v11, 31, v0
          v_lshlrev_b32 v11, 3, v11
          v_lshl_add_u32 v10, v12, 8, v11
          v_add_u32 v10, {EXB}, v10
          s_waitcnt lgkmcnt(0)""")
    lds_sync(a, 0, pfx + "_s0")
    for i in range(7): a(f"ds_read_b64 {vr(52+2*i,2)}, v10 offset:{i*256}")
    def horner(dst, src0, n, mr, mi, tmp):
        pr, pi = src0, src0 + 1
        for i in range(1, n):
            er, ei = (dst, dst + 1) if i == n - 1 else (tmp + 2*(i & 1), tmp + 2*(i & 1) + 1)
            a(f"v_fma_f32 v{er}, v{mr}, v{pr}, v{src0+2*i}")
            a(f"v_fma_f32 v{ei}, v{mr}, v{pi}, v{src0+2*i+1}")
            a(f"v_fma_f32 v{er}, -v{mi}, v{pi}, v{er}")
            a(f"v_fmac_f32 v{ei}, v{mi}, v{pr}")
            pr, pi = er, ei
    a("s_waitcnt lgkmcnt(0)")
    PIN = 68
    horner(PIN, 52, 7, L16R, L16I, 72)
    a(f"""v_fma_f32 v70, v{L16R}, v{PIN}, v50
          v_fma_f32 v71, v{L16R}, v{PIN+1}, v51
          v_fma_f32 v70, -v{L16I}, v{PIN+1}, v70
          v_fmac_f32 v71, v{L16I}, v{PIN}
          v_max_f32 v70, v70, v70
          v_max_f32 v71, v71, v71
          s_lshl_b32 s34, s22, 13
          s_lshl_b32 s33, s21, 8
          s_add_u32 s34, s34, s33
          s_add_u32 s34, s34, {EB}
          s_add_u32 s35, s34, 4096
          s_cmp_eq_u32 s20, 3
          s_cbranch_scc0 {pfx}_nopub
          s_mov_b32 exec_lo, 0
          buffer_store_dwordx2 v[70:71], v11, s[8:11], s35 offen sc1
          s_mov_b32 exec_lo, -1""")
    a.label(pfx + "_nopub")
    stamp(a, 3)
    a(f"""v_lshrrev_b32 v10, 5, v0
          v_lshl_add_u32 v10, v10, 11, v11
          s_mov_b32 s39, {SPIN}""")
    a.label(pfx + "_ep")
    for i in range(8): a(f"buffer_load_dwordx2 {vr(48+2*i,2)}, v10, s[8:11], s34 offen offset:{i*256} sc1")
    a(f"""s_sub_u32 s39, s39, 1
          s_cbranch_scc1 {pfx}_ex
          s_waitcnt vmcnt(0)
          v_max3_u32 v13, v48, v49, v50""")
    for i in range(51, 63, 2): a(f"v_max3_u32 v13, v{i}, v{i+1}, v13")
    a(f"""v_max_u32 v13, v63, v13
          v_cmp_eq_u32 vcc, -1, v13
          s_and_b64 vcc, exec, vcc
          s_cbranch_vccz {pfx}_ex
          s_sleep 4
          s_branch {pfx}_ep""")
    a.label(pfx + "_ex")
    a.wait_vm0()
    stamp(a, 4)
    horner(64, 48, 8, L128R, L128I, 72)
    a(f"""v_mov_b32 v66, v64
          v_mov_b32 v67, v65
          s_nop 1
          v_permlane32_swap_b32 v64, v66
          v_permlane32_swap_b32 v65, v67
          s_nop 1
          v_fma_f32 v66, v{LKR}, v64, v66
          v_fma_f32 v67, v{LKR}, v65, v67
          v_fma_f32 v66, -v{LKI}, v65, v66
          v_fmac_f32 v67, v{LKI}, v64
          v_fmac_f32 v{PIN}, v{LSR}, v66
          v_fmac_f32 v{PIN+1}, v{LSR}, v67
          v_fma_f32 v{PIN}, -v{LSI}, v67, v{PIN}
          v_fmac_f32 v{PIN+1}, v{LSI}, v66""")
    HR, HI = 48, 56
    pr, pi = PIN, PIN + 1
    for r in range(16):
        a(f"v_fmac_f32 v{UR+r}, v{LR}, v{pr}")
        a(f"v_fmac_f32 v{UI+r}, v{LR}, v{pi}")
        a(f"v_fmac_f32 v{UR+r}, v{NLI}, v{pi}")
        a(f"v_fmac_f32 v{UI+r}, v{LI}, v{pr}")
        pr, pi = UR + r, UI + r
        t = 72 + 2*(r & 1)
        a(f"v_mul_f32 v{t}, v{SGR}, v{pr}")
        a(f"v_mul_f32 v{t+1}, v{NSI}, v{pr}")
        a(f"v_fmac_f32 v{t}, v{NSI}, v{pi}")
        a(f"v_fmac_f32 v{t+1}, v{NSR}, v{pi}")
        if r & 1:
            a(f"v_cvt_pk_bf16_f32 v{HR+(r>>1)}, v72, v74")
            a(f"v_cvt_pk_bf16_f32 v{HI+(r>>1)}, v73, v75")
    a(f"""v_and_b32 v10, 31, v0
          v_lshlrev_b32 v10, 6, v10
          v_lshrrev_b32 v11, 5, v0
          v_lshl_add_u32 v10, v11, 5, v10
          s_add_u32 s33, s26, 16384
          v_add_u32 v10, s33, v10
          v_lshlrev_b32 v11, 3, v11
          v_bfe_u32 v13, v0, 2, 2
          v_add_u32 v11, v11, v13
          v_lshlrev_b32 v11, 6, v11
          v_bfe_u32 v13, v0, 4, 1
          v_lshl_add_u32 v11, v13, 5, v11
          v_and_b32 v13, 3, v0
          v_lshl_add_u32 v11, v13, 3, v11
          v_add_u32 v11, s33, v11
          s_lshl_b32 s34, s29, 4
          s_add_u32 s34, s34, s22
          s_lshl_b32 s35, s34, 2
          s_add_u32 s35, s35, {FH}
          s_lshl_b32 s34, s34, 12
          s_add_u32 s34, s34, {HF}""")
    HT = 76
    for mat, H in enumerate((HR, HI)):
        a(f"ds_write_b128 v10, {vr(H,4)}")
        a(f"ds_write_b128 v10, {vr(H+4,4)} offset:16")
        for sp in range(2):
            for q in range(2):
                a(f"ds_read_b64_tr_b16 {vr(HT+8*mat+4*sp+2*q,2)}, v11 offset:{(16*sp+4*q)*64}")
    a("s_waitcnt lgkmcnt(4)")
    for sp in range(2): a(f"buffer_store_dwordx4 {vr(HT+4*sp,4)}, v1, s[8:11], s34 offen offset:{sp*1024} sc1")
    a("s_waitcnt lgkmcnt(0)")
    for sp in range(2): a(f"buffer_store_dwordx4 {vr(HT+8+4*sp,4)}, v1, s[8:11], s34 offen offset:{2048+sp*1024} sc1")
    a(f"""v_mov_b32 v13, 1
          v_mov_b32 v10, 0
          s_waitcnt vmcnt(0)
          s_mov_b64 exec, 1
          buffer_store_dword v13, v10, s[8:11], s35 offen sc1
          s_mov_b64 exec, -1""")
    stamp(a, 5)
    a(f"""v_bfe_u32 v10, v0, 2, 1
          v_lshlrev_b32 v10, 4, v10
          v_and_b32 v11, 3, v0
          v_add_lshl_u32 v10, v10, v11, 2
          s_lshl_b32 s33, s27, 7
          s_lshl_b32 s34, s20, 4
          s_add_u32 s34, s34, s33
          s_add_u32 s34, s34, {FH}
          s_mov_b32 s39, {SPIN}""")
    a.label(pfx + "_hp")
    a(f"""buffer_load_dword v13, v10, s[8:11], s34 offen sc1
          s_sub_u32 s39, s39, 1
          s_cbranch_scc1 {pfx}_hx
          s_waitcnt vmcnt(0)
          v_cmp_ne_u32 vcc, 1, v13
          s_and_b64 vcc, exec, vcc
          s_cbranch_vccz {pfx}_hx
          s_sleep 4
          s_branch {pfx}_hp""")
    a.label(pfx + "_hx")
    a.wait_vm0()
    stamp(a, 6)
    a(f"""s_lshl_b32 s24, s27, 17
          s_lshl_b32 s33, s20, 14
          s_add_u32 s24, s24, s33
          s_add_u32 s24, s24, {HF}""")
    ACC = [16, 32, 48, 64]; HFR = 80; CF = 144
    def ldh(g):
        for half in range(2):
            for t in range(2):
                k = 2*g + half
                a(f"s_add_u32 s33, s24, {t*65536 + (k>>2)*4096}")
                a.vmem(f"buffer_load_dwordx4 {vr(HFR+16*(g&3)+8*half+4*t,4)}, v1, s[8:11], s33 offen offset:{(k&3)*1024} sc1", ("h", g))
    for g in range(4): ldh(g)
    for g in range(8):
        a.wait_vm([("c", g), ("h", g)])
        for half in range(2):
            for b in range(2):
                a.lds(f"ds_read_b128 {vr(CF+8*half+4*b,4)}, v{vR+half} offset:{(g&3)*4096 + b*2048}", ("r", half))
        for half in range(2):
            a.wait_lg(("r", half))
            if half == 1 and g + 4 < 8: dma2(g + 4)
            for t in range(2):
                for b in range(2):
                    A = ACC[2*t+b]
                    a(f"{MFMA} {vr(A,16)}, {vr(HFR+16*(g&3)+8*half+4*t,4)}, {vr(CF+8*half+4*b,4)}, {'0' if g==0 and half==0 else vr(A,16)}")
        if g + 4 < 8: ldh(g + 4)
    stamp(a, 7)
    a("""s_lshr_b32 s33, s20, 1
         s_lshl_b32 s34, s27, 1
         s_add_u32 s33, s33, s34
         s_and_b32 s34, s20, 1
         s_lshl_b32 s35, s28, 1
         s_add_u32 s34, s34, s35
         s_lshl_b32 s37, s33, 17
         s_lshl_b32 s35, s34, 7
         s_add_u32 s37, s37, s35
         s_lshl_b32 s38, s33, 15
         s_lshl_b32 s35, s34, 6
         s_add_u32 s38, s38, s35
         v_and_b32 v3, 31, v0
         v_lshrrev_b32 v10, 5, v0
         v_lshlrev_b32 v2, 14, v10
         v_lshl_add_u32 v2, v3, 2, v2
         v_lshlrev_b32 v10, 12, v10
         v_lshl_add_u32 v10, v3, 1, v10
         v_lshl_add_u32 v11, v3, 1, s35""")
    XS = 96
    a(f"global_load_ushort v{XS+16}, v11, s[56:57]")
    for r in range(16):
        row = 8*(r >> 2) + (r & 3)
        a(f"s_add_u32 s33, s38, {(row>>2)*4096}")
        a(f"buffer_load_ushort v{XS+r}, v10, s[12:15], s33 offen offset:{(row&3)*1024}")
    reduce4_and_pick(a, ACC, 1, SREG, SSMB, lambda: lds_sync(a, 1, pfx + "_s1"))
    a("s_waitcnt vmcnt(0)")
    a(f"v_lshlrev_b32 v{XS+16}, 16, v{XS+16}")
    for r in range(16):
        row = 8*(r >> 2) + (r & 3)
        a(f"v_lshlrev_b32 v{XS+r}, 16, v{XS+r}")
        a(f"s_add_u32 s33, s37, {row*4096}")
        a(f"v_fmac_f32 v{ACC[0]+r}, v{XS+r}, v{XS+16}")
        a(f"buffer_store_dword v{ACC[0]+r}, v2, s[48:51], s33 offen")
    stamp(a, 8)
    stamp_flush(a, 9, 8, 3)
    a("s_endpgm")

def gen_ssm():
    a = Asm()
    a("s_cmp_ge_u32 s2, 256")
    a("s_cbranch_scc1 Ls_end")
    stamp(a, 0)
    a(f"s_load_dwordx2 s[4:5], s[0:1], {WS}")
    wave_id(a, 20)
    ssm_lds_init(a)
    a("s_waitcnt lgkmcnt(0)")
    a("s_barrier")
    srd(a, 8, 4, WS_BYTES)
    gen_ssm_body(a, "Ls")
    a.label("Ls_end")
    a("s_endpgm")
    return a.text(), 168

HEADER = open("concat_heads__ssm_conv_s5__mha_block__prompt.s.ref").read().split("; Override launch")[0]

def build(kernels, launches):
    s = HEADER
    for (name, grid, block, lds) in launches:
        s += f"; @launch kernel={name} grid=({grid},1,1) block=({block},1,1) lds={lds}\n"
    s += '.amdgcn_target "amdgcn-amd-amdhsa--gfx950"\n'
    for name, (txt, vg) in kernels.items():
        s += kernel_head(name) + txt
    for name, (txt, vg) in kernels.items():
        s += kernel_desc(name, vg)
    return s

if __name__ == "__main__":
    out = sys.argv[1] if len(sys.argv) > 1 else "out.s"
    STAMP = "stamp" in sys.argv[2:]
    if "hdiag" in sys.argv[2:]:
        STAMP = True
        HDIAG = {0: (0, 2, 6), 1: (1, 2, 7), 2: (2, 2, 6), 3: (3, 2, 8)}
    kernels = {"qkv_kernel": gen_qkv(), "attn_kernel": gen_attn(), "wo_kernel": gen_wo(), "ssm_kernel": gen_ssm()}
    launches = [("qkv_kernel", 256, 256, 163840), ("attn_kernel", 256, 512, 81920), ("wo_kernel", 256, 256, 65536), ("ssm_kernel", 256, 256, LDS_TOTAL)]
    open(out, "w").write(build(kernels, launches))
```

```python
import sys, struct
from asmlib import *

MB = 1 << 20
QF, KF, VF, OF, HF = 0, 2*MB, 4*MB, 6*MB, 8*MB
EB = 12*MB
FH = EB + 128*1024
WS_BYTES = 16*MB
A_X, A_LRE, A_LIM, A_BRE, A_BIM, A_CRE, A_CIM, A_LDT, A_DSK, B_X, B_WQKV, B_WO, OUT, DBG, WS = [8*i for i in range(15)]
MFMA = "v_mfma_f32_32x32x16_bf16"
def f2h(x): return "0x%08x" % struct.unpack("<I", struct.pack("<f", x))[0]
LOG2E = 1.4426950408889634

STAMP = False
STB = 14*MB
HDIAG = None
def stamp(a, i):
    if STAMP: a(f"s_memtime s[{64+2*i}:{65+2*i}]")
    if STAMP and HDIAG and i == 0: a("s_memrealtime s[92:93]")
def stamp_flush(a, n, srdreg, kidx, vt=8):
    if not STAMP: return
    if HDIAG:
        li, sa, sb, last = HDIAG[kidx]
        a(f"""s_memrealtime s[94:95]
              s_load_dwordx2 s[60:61], s[0:1], {DBG}
              s_waitcnt lgkmcnt(0)
              s_or_b32 s62, s2, s20
              s_cmp_eq_u32 s62, 0
              s_cbranch_scc0 Lhd{kidx}
              s_sub_u32 s62, s{64+2*sa}, s64
              s_sub_u32 s63, s{64+2*sb}, s64
              s_mov_b64 exec, 1
              v_mov_b32 v{vt}, s92
              v_mov_b32 v{vt+1}, s94
              v_mov_b32 v{vt+2}, s62
              v_mov_b32 v{vt+3}, s63
              v_mov_b32 v{vt+4}, {STB + 16*li}
              buffer_store_dwordx4 v[{vt}:{vt+3}], v{vt+4}, s[{srdreg}:{srdreg+3}], 0 offen
              s_waitcnt vmcnt(0)""")
        if last:
            a(f"""s_mov_b64 exec, 0xffff
                  v_lshlrev_b32 v{vt+4}, 2, v0
                  v_add_u32 v{vt}, {STB}, v{vt+4}
                  buffer_load_dword v{vt+1}, v{vt}, s[{srdreg}:{srdreg+3}], 0 offen sc1
                  s_waitcnt vmcnt(0)
                  global_store_dword v{vt+4}, v{vt+1}, s[60:61]
                  s_sub_u32 s60, s60, {li*512}
                  s_subb_u32 s61, s61, 0
                  global_store_dword v{vt+4}, v{vt+1}, s[60:61]
                  s_waitcnt vmcnt(0)""")
        a.label(f"Lhd{kidx}")
        return
    a("s_memrealtime s[94:95]")
    a("s_waitcnt lgkmcnt(0)")
    a("s_mov_b64 exec, 1")
    a("s_lshl_b32 s60, s2, 4")
    a("s_add_u32 s60, s60, s20")
    a("s_lshl_b32 s60, s60, 6")
    a(f"s_add_u32 s60, s60, {STB + kidx*262144}")
    a(f"v_mov_b32 v{vt}, 0")
    for i in range(n):
        a(f"v_mov_b32 v{vt+1}, s{64+2*i}")
        a(f"buffer_store_dword v{vt+1}, v{vt}, s[{srdreg}:{srdreg+3}], s60 offen offset:{4*i}")
    a(f"v_mov_b32 v{vt+1}, s94")
    a(f"buffer_store_dword v{vt+1}, v{vt}, s[{srdreg}:{srdreg+3}], s60 offen offset:60")
    a("s_waitcnt vmcnt(0)")

def wave_id(a, sdst, vtmp=1):
    a(f"v_lshrrev_b32 v{vtmp}, 6, v0")
    a("v_and_b32 v0, 63, v0")
    a(f"v_readfirstlane_b32 s{sdst}, v{vtmp}")

def gen_qkv():
    a = Asm()
    a("s_cmp_ge_u32 s2, 256")
    a("s_cbranch_scc1 Lq_end")
    stamp(a, 0)
    a(f"s_load_dwordx4 s[4:7], s[0:1], {B_X}")
    a(f"s_load_dwordx2 s[28:29], s[0:1], {WS}")
    wave_id(a, 20)
    a("""s_and_b32 s30, s2, 7
         s_lshr_b32 s31, s2, 3
         s_lshr_b32 s21, s30, 1
         s_lshl_b32 s21, s21, 2
         s_and_b32 s33, s31, 3
         s_add_u32 s21, s21, s33
         s_and_b32 s22, s30, 1
         s_lshl_b32 s22, s22, 3
         s_lshr_b32 s34, s31, 2
         s_add_u32 s22, s22, s34
         s_lshl_b32 s33, s33, 1
         s_add_u32 s23, s34, s33""")
    a("""s_lshl_b32 s24, s21, 2
         s_add_u32 s24, s24, s20
         s_mov_b32 s35, s24
         s_lshl_b32 s24, s24, 15
         s_mul_i32 s25, s20, 49152
         s_lshl_b32 s33, s22, 6
         s_add_u32 s25, s25, s33
         s_lshl_b32 s26, s20, 14
         s_mul_i32 s27, s20, 3072
         s_add_u32 s27, s27, 65536""")
    for c in range(8):
        a(f"s_add_u32 s33, s23, {c}")
        a("s_and_b32 s33, s33, 7")
        a("s_lshl_b32 s34, s33, 7")
        a(f"s_add_u32 s{40+c}, s24, s34")
        a("s_mul_i32 s34, s33, 196608")
        a(f"s_add_u32 s{48+c}, s25, s34")
    vXa, vXb, vWd, vXr, vWr = 2, 3, 4, 8, 12
    T = 14
    a(f"""v_lshrrev_b32 v{T}, 3, v0
          v_lshlrev_b32 v{T}, 10, v{T}
          v_and_b32 v{T+1}, 7, v0
          v_lshrrev_b32 v{T+2}, 4, v0
          v_xor_b32 v{T+1}, v{T+1}, v{T+2}
          v_lshl_add_u32 v{vXa}, v{T+1}, 4, v{T}
          v_xor_b32 v{vXb}, 64, v{vXa}""")
    for n in range(3):
        a(f"""v_add_u32 v{T}, {64*n}, v0
              v_mul_u32_u24 v{T+1}, 5462, v{T}
              v_lshrrev_b32 v{T+1}, 16, v{T+1}
              v_mul_u32_u24 v{T+2}, 12, v{T+1}
              v_sub_u32 v{T}, v{T}, v{T+2}
              v_mul_u32_u24 v{T+1}, 3072, v{T+1}
              v_lshrrev_b32 v{T+2}, 2, v{T}
              v_lshl_add_u32 v{T+1}, v{T+2}, 10, v{T+1}
              v_and_b32 v{T}, 3, v{T}
              v_lshl_add_u32 v{vWd+n}, v{T}, 4, v{T+1}""")
    a("s_waitcnt lgkmcnt(0)")
    srd(a, 8, 4, 2048*512*2)
    srd(a, 12, 6, 512*1536*2)
    srd(a, 16, 28, WS_BYTES)
    def dma_w(c):
        for n in range(3):
            a(f"s_add_u32 m0, s27, {c*12288 + n*1024}")
            a("s_nop 0")
            a.vmem(f"buffer_load_dwordx4 v{vWd+n}, s[12:15], s{48+c} offen lds", ("w", c))
    def dma_x(c):
        for n in range(4):
            a(f"s_add_u32 m0, s26, {(c&3)*4096 + n*1024}")
            a(f"s_add_u32 s33, s{40+c}, {n*8192}")
            a.vmem(f"buffer_load_dwordx4 v{vXa if n%2==0 else vXb}, s[8:11], s33 offen lds", ("x", c))
    for c in range(4):
        dma_w(c); dma_x(c)
    for c in range(4, 8):
        dma_w(c)
    a(f"""v_and_b32 v{T}, 31, v0
          v_lshrrev_b32 v{T+1}, 1, v{T}
          v_and_b32 v{T+1}, 7, v{T+1}
          v_lshrrev_b32 v{T+2}, 5, v0
          v_xor_b32 v{T+1}, v{T+1}, v{T+2}
          v_lshlrev_b32 v{T+1}, 4, v{T+1}
          v_lshl_add_u32 v{T}, v{T}, 7, s26""")
    for s in range(4):
        a(f"v_xor_b32 v{T+3}, {32*s}, v{T+1}")
        a(f"v_add_u32 v{vXr+s}, v{T}, v{T+3}")
    a(f"""v_lshlrev_b32 v{T}, 3, v{T+2}
          v_bfe_u32 v{T+1}, v0, 2, 2
          v_add_u32 v{T}, v{T}, v{T+1}
          v_mul_u32_u24 v{T}, 192, v{T}
          v_bfe_u32 v{T+1}, v0, 4, 1
          v_lshl_add_u32 v{T}, v{T+1}, 5, v{T}
          v_and_b32 v{T+1}, 3, v0
          v_lshl_add_u32 v{T}, v{T+1}, 3, v{T}
          v_add_u32 v{vWr}, 0x10000, v{T}
          v_add_u32 v{vWr+1}, 0x1c000, v{T}""")
    ACC = [32, 48, 64]; XF = [80, 84]; WF = [88, 100]
    def reads(t):
        c, s, b = t >> 2, t & 3, t & 1
        a.lds(f"ds_read_b128 {vr(XF[b],4)}, v{vXr+s} offset:{(c&3)*4096}", ("r", t))
        for sec in range(3):
            for q in range(2):
                off = (c & 3)*12288 + (16*s + 4*q)*192 + 64*sec
                a.lds(f"ds_read_b64_tr_b16 {vr(WF[b]+4*sec+2*q,2)}, v{vWr+(c>>2)} offset:{off}", ("r", t))
    def chunk_ready(c):
        a.wait_vm([("w", c), ("x", c)])
        a("s_barrier")
    stamp(a, 1)
    chunk_ready(0)
    stamp(a, 2)
    reads(0)
    for t in range(32):
        c, s, b = t >> 2, t & 3, t & 1
        if t + 1 < 32:
            if s == 3: chunk_ready(c + 1)
            reads(t + 1)
        a.wait_lg(("r", t))
        cin = lambda i: ("0" if t == 0 else vr(ACC[i], 16))
        a(f"{MFMA} {vr(ACC[0],16)}, {vr(WF[b],4)}, {vr(XF[b],4)}, {cin(0)}")
        a(f"{MFMA} {vr(ACC[1],16)}, {vr(WF[b]+4,4)}, {vr(XF[b],4)}, {cin(1)}")
        a(f"{MFMA} {vr(ACC[2],16)}, {vr(XF[b],4)}, {vr(WF[b]+8,4)}, {cin(2)}")
        if s == 3 and c + 4 < 8: dma_x(c + 4)
        if t == 15: stamp(a, 3)
    stamp(a, 4)
    a(f"""v_lshlrev_b32 v2, 4, v0
          v_bfe_u32 v3, v0, 4, 1
          v_lshlrev_b32 v3, 16, v3
          v_lshrrev_b32 v4, 5, v0
          v_lshl_add_u32 v3, v4, 8, v3
          v_and_b32 v4, 15, v0
          v_lshl_add_u32 v3, v4, 4, v3
          s_lshl_b32 s33, s22, 17
          s_lshl_b32 s34, s35, 10
          s_add_u32 s33, s33, s34
          s_add_u32 s36, s33, {QF}
          s_add_u32 s37, s33, {QF+65536}
          s_add_u32 s38, s33, {KF}
          s_add_u32 s39, s33, {KF+65536}
          s_add_u32 s34, s33, {VF}""")
    sc = f2h(0.25*LOG2E)
    for r in range(16): a(f"v_mul_f32 v{ACC[0]+r}, {sc}, v{ACC[0]+r}")
    P = 80
    for j in range(8): a(f"v_cvt_pk_bf16_f32 v{P+j}, v{ACC[0]+2*j}, v{ACC[0]+2*j+1}")
    a(f"buffer_store_dwordx4 {vr(P,4)}, v2, s[16:19], s36 offen")
    a(f"buffer_store_dwordx4 {vr(P+4,4)}, v2, s[16:19], s37 offen")
    for j in range(8): a(f"v_cvt_pk_bf16_f32 v{P+8+j}, v{ACC[1]+2*j}, v{ACC[1]+2*j+1}")
    a(f"buffer_store_dwordx4 {vr(P+8,4)}, v2, s[16:19], s38 offen")
    a(f"buffer_store_dwordx4 {vr(P+12,4)}, v2, s[16:19], s39 offen")
    for j in range(8): a(f"v_cvt_pk_bf16_f32 v{P+16+j}, v{ACC[2]+2*j}, v{ACC[2]+2*j+1}")
    a(f"buffer_store_dwordx4 {vr(P+16,4)}, v3, s[16:19], s34 offen")
    a(f"buffer_store_dwordx4 {vr(P+20,4)}, v3, s[16:19], s34 offen offset:512")
    stamp(a, 5)
    if STAMP:
        a("s_waitcnt vmcnt(0)")
        stamp(a, 6)
        stamp_flush(a, 7, 16, 0, vt=120)
        a("s_mov_b64 exec, -1")
    a(f"""s_cmp_gt_u32 s20, 1
          s_cbranch_scc1 Lq_end
          s_bfe_u32 s33, s2, 0x10003
          s_sub_u32 s33, 0, s33
          s_lshl_b32 s34, s2, 9
          s_add_u32 s34, s34, {EB}
          s_lshl_b32 s36, s2, 4
          s_add_u32 s36, s36, {FH}
          s_cmp_eq_u32 s20, 0
          s_cselect_b32 s33, s33, 0
          s_cselect_b32 s34, s34, s36
          s_cselect_b32 exec_lo, -1, 1
          s_mov_b32 exec_hi, 0
          v_mov_b32 v8, s33
          v_mov_b32 v9, s33
          v_mov_b32 v10, s33
          v_mov_b32 v11, s33
          buffer_store_dwordx4 v[8:11], v2, s[16:19], s34 offen""")
    a.label("Lq_end")
    a("s_endpgm")
    return a.text(), 128

KR, VR_, S0, S1, PR, OR_, QA, QB = 8, 40, 104, 120, 136, 144, 160, 164
RED = 0
ONES = "0x3f803f80"
def gen_attn_body(a, pfx):
    a("""s_and_b32 s30, s2, 7
         s_lshr_b32 s31, s2, 3
         s_lshl_b32 s21, s30, 2
         s_lshr_b32 s33, s31, 3
         s_add_u32 s21, s21, s33
         s_and_b32 s22, s31, 7""")
    a(f"""s_lshl_b32 s33, s21, 16
          s_lshl_b32 s34, s20, 13
          s_add_u32 s34, s34, s33
          s_add_u32 s24, s34, {KF}
          s_add_u32 s25, s34, {KF+4096}
          s_add_u32 s26, s34, {VF}
          s_add_u32 s27, s34, {VF+4096}
          s_lshl_b32 s34, s22, 13
          s_add_u32 s28, s34, s33
          s_add_u32 s28, s28, {QF}""")
    a("""v_lshlrev_b32 v1, 4, v0
         v_lshrrev_b32 v2, 5, v0
         v_lshlrev_b32 v2, 8, v2
         v_and_b32 v7, 15, v0
         v_lshl_add_u32 v2, v7, 4, v2
         s_mul_i32 s33, s20, 1280
         v_add_u32 v3, s33, v1
         v_lshl_add_u32 v5, v0, 2, s33""")
    def ldk(kt):
        a.vmem(f"buffer_load_dwordx4 {vr(KR+4*kt,4)}, v1, s[8:11], s{24+(kt>>2)} offen offset:{(kt&3)*1024}", ("K", kt))
    def ldv(kt):
        a("s_mov_b64 exec, s[36:37]")
        for m in range(2):
            a.vmem(f"buffer_load_dwordx4 {vr(VR_+8*kt+4*m,4)}, v2, s[8:11], s{26+(kt>>2)} offen offset:{(kt&3)*1024+m*512}", ("V", kt, m))
        a("s_mov_b64 exec, -1")
    def ones(kt):
        for r in range(8): a(f"v_mov_b32 v{VR_+8*kt+r}, v4")
    a("s_mov_b32 s36, 0xffff")
    a("s_mov_b32 s37, 0xffff")
    a("s_setprio 1")
    a.vmem(f"buffer_load_dwordx4 {vr(QA,4)}, v1, s[8:11], s28 offen", ("Q", 0))
    ldk(0); ldk(1)
    a(f"v_mov_b32 v4, {ONES}")
    ones(0); ldv(0)
    for kt in range(1, 8): ones(kt)
    ldk(2); ldv(1)
    stamp(a, 1)
    SB = [S0, S1]
    def step(i, Qcur, Qnext, first, drain_off, last_body):
        S = SB[i & 1]; Sn = SB[(i + 1) & 1]
        E = lambda r: a(f"v_exp_f32 v{S+r}, v{S+r}")
        C = lambda j: a(f"v_cvt_pk_bf16_f32 v{PR+j}, v{S+2*j}, v{S+2*j+1}")
        def pv(kt, m, zero=False):
            a.wait_vm(("V", kt, m))
            a(f"{MFMA} {vr(OR_,16)}, {vr(VR_+8*kt+4*m,4)}, {vr(PR+4*m,4)}, {'0' if zero else vr(OR_,16)}")
        if i < 7:
            a.wait_vm(("K", i + 1))
            a(f"{MFMA} {vr(Sn,16)}, {vr(KR+4*(i+1),4)}, {vr(Qcur,4)}, 0")
        elif not last_body:
            a.wait_vm(("Q", 1))
            a(f"{MFMA} {vr(Sn,16)}, {vr(KR,4)}, {vr(Qnext,4)}, 0")
        if first:
            if i + 3 < 8: ldk(i + 3)
            if i + 2 < 8: ldv(i + 2)
        if i == (5 if first else 0) and not last_body:
            a("s_add_u32 s28, s28, 1024")
            a.vmem(f"buffer_load_dwordx4 {vr(Qnext,4)}, v1, s[8:11], s28 offen", ("Q", 1))
        E(0); E(1); E(2); E(3); C(0); E(4); E(5)
        if not (i == 0 and first): pv((i - 1) & 7, 1)
        C(1); E(6); E(7); C(2); E(8); C(3); E(9); E(10)
        if i != 0: pv(i, 0)
        E(11); C(4); E(12); E(13); C(5); E(14)
        if i == 0:
            if not first: drain(S, drain_off)
            pv(0, 0, zero=True)
        E(15); C(6); C(7)
    def drain(T, off):
        for j in range(4): a(f"v_cvt_pk_bf16_f32 v{T+j}, v{OR_+2*j}, v{OR_+2*j+1}")
        a(f"ds_write_b32 v5, v{OR_+8} offset:{RED + off + 1024}")
        a(f"ds_write_b128 v3, {vr(T,4)} offset:{RED + off}")
    def body(j, Qcur, Qnext, first=False, last=False, drain_off=0):
        for i in range(8): step(i, Qcur, Qnext, first, drain_off, last)
    a.wait_vm([("Q", 0), ("K", 0)])
    a(f"{MFMA} {vr(S0,16)}, {vr(KR,4)}, {vr(QA,4)}, 0")
    a("s_nop 7")
    a("s_nop 3")
    stamp(a, 2)
    body(0, QA, QB, first=True)
    a.wait_vm0()
    stamp(a, 3)
    a("s_mov_b32 s29, 3")
    a.label(pfx + "_loop")
    body(1, QB, QA, drain_off=0)
    body(2, QA, QB, drain_off=10240)
    a("v_add_u32 v3, 20480, v3")
    a("v_add_u32 v5, 20480, v5")
    a("s_sub_u32 s29, s29, 1")
    a("s_cmp_lg_u32 s29, 0")
    a(f"s_cbranch_scc1 {pfx}_loop")
    stamp(a, 4)
    a("s_setprio 0")
    body(7, QB, QA, last=True, drain_off=0)
    stamp(a, 5)
    a("s_nop 1")
    a(f"{MFMA} {vr(OR_,16)}, {vr(VR_+8*7+4,4)}, {vr(PR+4,4)}, {vr(OR_,16)}")
    a("s_lshl_b32 s33, s22, 3")
    a("s_add_u32 s33, s33, s20")
    a("s_lshl_b32 s34, s33, 15")
    a("s_lshl_b32 s35, s21, 10")
    a("s_add_u32 s34, s34, s35")
    a(f"s_add_u32 s34, s34, {OF}")
    a("s_nop 5")
    drain(S0, 10240)
    a("s_mul_i32 s35, s20, 10240")
    a("v_add_u32 v3, s35, v1")
    a("v_lshl_add_u32 v5, v0, 2, s35")
    a("s_waitcnt lgkmcnt(0)")
    a("s_barrier")
    stamp(a, 6)
    T = KR
    for w in range(8):
        a(f"ds_read_b128 {vr(T+4*w,4)}, v3 offset:{RED + w*1280}")
        a(f"ds_read_b32 v{S0+w}, v5 offset:{RED + w*1280 + 1024}")
    for w in range(8):
        a(f"s_waitcnt lgkmcnt({min(15, 14-2*w)})")
        for j in range(4):
            if w == 0:
                a(f"v_lshlrev_b32 v{OR_+2*j}, 16, v{T+j}")
                a(f"v_and_b32 v{OR_+2*j+1}, 0xffff0000, v{T+j}")
            else:
                a(f"v_lshlrev_b32 v{S1+2*j}, 16, v{T+4*w+j}")
                a(f"v_and_b32 v{S1+2*j+1}, 0xffff0000, v{T+4*w+j}")
        if w == 0: a(f"v_mov_b32 v{OR_+8}, v{S0}")
        else:
            for r in range(8): a(f"v_add_f32 v{OR_+r}, v{OR_+r}, v{S1+r}")
            a(f"v_add_f32 v{OR_+8}, v{OR_+8}, v{S0+w}")
    a(f"""v_max3_f32 v7, abs(v{OR_}), abs(v{OR_+1}), abs(v{OR_+2})
          v_max3_f32 v7, abs(v{OR_+3}), abs(v{OR_+4}), v7
          v_max3_f32 v7, abs(v{OR_+5}), abs(v{OR_+6}), v7
          v_max_f32 v7, abs(v{OR_+7}), v7
          v_add_f32 v5, v{OR_}, v{OR_+1}
          v_add_f32 v5, v5, v{OR_+2}
          v_add_f32 v5, v5, v{OR_+3}
          v_add_f32 v5, v5, v{OR_+4}
          v_add_f32 v5, v5, v{OR_+5}
          v_add_f32 v5, v5, v{OR_+6}
          v_add_f32 v5, v5, v{OR_+7}
          v_cmp_o_f32 s[38:39], v5, v5
          v_cmp_gt_f32 vcc, 0x7e800000, v7
          s_and_b64 s[38:39], s[38:39], vcc
          v_cmp_le_f32 vcc, 0x1f800000, v{OR_+8}
          s_and_b64 s[38:39], s[38:39], vcc
          v_cmp_ge_f32 vcc, 0x5f800000, v{OR_+8}
          s_and_b64 s[38:39], s[38:39], vcc
          s_cmp_eq_u64 s[38:39], -1
          s_cbranch_scc0 {pfx}_slow""")
    a.label(pfx + "_fin")
    a(f"v_rcp_f32 v7, v{OR_+8}")
    a("s_nop 0")
    for r in range(8): a(f"v_mul_f32 v{OR_+r}, v7, v{OR_+r}")
    for j in range(4): a(f"v_cvt_pk_bf16_f32 v{PR+j}, v{OR_+2*j}, v{OR_+2*j+1}")
    a(f"buffer_store_dwordx4 {vr(PR,4)}, v1, s[8:11], s34 offen")
    stamp(a, 7)
    stamp_flush(a, 8, 8, 1)
    a("s_endpgm")
    a.label(pfx + "_slow")
    a(f"""s_lshl_b32 s35, s21, 16
          s_lshl_b32 s33, s33, 10
          s_add_u32 s33, s33, s35
          s_add_u32 s33, s33, {QF}
          buffer_load_dwordx4 {vr(QA,4)}, v1, s[8:11], s33 offen
          s_add_u32 s24, s35, {KF}
          s_add_u32 s26, s35, {VF}
          v_mov_b32 v7, 0xff800000
          s_mov_b32 s29, 0""")
    a.label(pfx + "_mx")
    a(f"""s_add_u32 s33, s24, s29
          buffer_load_dwordx4 {vr(KR,4)}, v1, s[8:11], s33 offen
          s_waitcnt vmcnt(0)
          {MFMA} {vr(S0,16)}, {vr(KR,4)}, {vr(QA,4)}, 0
          s_nop 15""")
    for j in range(8): a(f"v_max3_f32 v7, v{S0+2*j}, v{S0+2*j+1}, v7")
    a(f"""s_add_u32 s29, s29, 1024
          s_cmp_lt_u32 s29, 65536
          s_cbranch_scc1 {pfx}_mx
          v_mov_b32 v5, v7
          s_nop 1
          v_permlane32_swap_b32 v5, v7
          s_nop 1
          v_max_f32 v7, v5, v7
          v_sub_f32 v7, 0, v7""")
    for r in range(16): a(f"v_mov_b32 v{S1+r}, v7")
    for r in range(16): a(f"v_mov_b32 v{OR_+r}, 0")
    a("s_mov_b32 s29, 0")
    a.label(pfx + "_sl")
    a(f"""s_add_u32 s33, s24, s29
          buffer_load_dwordx4 {vr(KR,4)}, v1, s[8:11], s33 offen
          s_add_u32 s33, s26, s29
          s_mov_b64 exec, s[36:37]
          buffer_load_dwordx4 {vr(VR_,4)}, v2, s[8:11], s33 offen
          buffer_load_dwordx4 {vr(VR_+4,4)}, v2, s[8:11], s33 offen offset:512
          s_mov_b64 exec, -1
          s_waitcnt vmcnt(0)
          {MFMA} {vr(S0,16)}, {vr(KR,4)}, {vr(QA,4)}, {vr(S1,16)}
          s_nop 15""")
    for r in range(16): a(f"v_exp_f32 v{S0+r}, v{S0+r}")
    a("s_nop 0")
    for j in range(8): a(f"v_cvt_pk_bf16_f32 v{PR+j}, v{S0+2*j}, v{S0+2*j+1}")
    a(f"""s_nop 1
          {MFMA} {vr(OR_,16)}, {vr(VR_,4)}, {vr(PR,4)}, {vr(OR_,16)}
          {MFMA} {vr(OR_,16)}, {vr(VR_+4,4)}, {vr(PR+4,4)}, {vr(OR_,16)}
          s_add_u32 s29, s29, 1024
          s_cmp_lt_u32 s29, 65536
          s_cbranch_scc1 {pfx}_sl
          s_nop 15
          s_branch {pfx}_fin""")

def gen_attn():
    a = Asm()
    a("s_cmp_ge_u32 s2, 256")
    a("s_cbranch_scc1 La_end")
    stamp(a, 0)
    a(f"s_load_dwordx2 s[4:5], s[0:1], {WS}")
    wave_id(a, 20)
    a("s_waitcnt lgkmcnt(0)")
    srd(a, 8, 4, WS_BYTES)
    gen_attn_body(a, "La")
    a.label("La_end")
    a("s_endpgm")
    return a.text(), 168

def reduce4_and_pick(a, ACC, vL, lds_base_sgpr_stride, region, sync, wave=20):
    stride = lds_base_sgpr_stride
    a(f"s_mul_i32 s33, s{wave}, {stride}")
    a(f"s_add_u32 s33, s33, {region}")
    a(f"v_add_u32 v4, s33, v{vL}")
    for t in range(4):
        for q in range(4):
            a(f"ds_write_b128 v4, {vr(ACC[t]+4*q,4)} offset:{t*4096+q*1024}")
    a("s_waitcnt lgkmcnt(0)")
    sync()
    a(f"s_lshl_b32 s33, s{wave}, 12")
    a(f"s_add_u32 s33, s33, {region}")
    a(f"v_add_u32 v4, s33, v{vL}")
    if 3*stride + 3072 > 65535:
        a(f"v_add_u32 v5, {2*stride}, v4")
    for w in range(4):
        for q in range(4):
            if 3*stride + 3072 > 65535 and w >= 2:
                a(f"ds_read_b128 {vr(ACC[w]+4*q,4)}, v5 offset:{(w-2)*stride+q*1024}")
            else:
                a(f"ds_read_b128 {vr(ACC[w]+4*q,4)}, v4 offset:{w*stride+q*1024}")
        if w == 1: pass
    a("s_waitcnt lgkmcnt(8)")
    for r in range(16): a(f"v_add_f32 v{ACC[0]+r}, v{ACC[0]+r}, v{ACC[1]+r}")
    a("s_waitcnt lgkmcnt(0)")
    for r in range(16): a(f"v_add_f32 v{ACC[2]+r}, v{ACC[2]+r}, v{ACC[3]+r}")
    for r in range(16): a(f"v_add_f32 v{ACC[0]+r}, v{ACC[0]+r}, v{ACC[2]+r}")

def gen_wo():
    a = Asm()
    a("s_cmp_ge_u32 s2, 256")
    a("s_cbranch_scc1 Lo_end")
    stamp(a, 0)
    a(f"s_load_dwordx4 s[4:7], s[0:1], {B_WO}")
    a(f"s_load_dwordx2 s[28:29], s[0:1], {WS}")
    wave_id(a, 20)
    a("""s_and_b32 s30, s2, 7
         s_lshr_b32 s31, s2, 3
         s_lshl_b32 s21, s30, 2
         s_and_b32 s33, s31, 3
         s_add_u32 s21, s21, s33
         s_lshr_b32 s22, s31, 2""")
    a(f"""s_lshl_b32 s24, s21, 16
          s_lshl_b32 s33, s20, 13
          s_add_u32 s24, s24, s33
          s_add_u32 s24, s24, {OF}
          s_add_u32 s25, s24, 4096
          s_add_u32 s26, s24, 32768
          s_add_u32 s27, s24, 36864
          s_lshl_b32 s35, s20, 17
          s_lshl_b32 s33, s22, 7
          s_add_u32 s35, s35, s33
          s_lshl_b32 s36, s20, 14""")
    a("""v_lshlrev_b32 v1, 4, v0
         v_lshrrev_b32 v2, 3, v0
         v_lshlrev_b32 v2, 10, v2
         v_and_b32 v3, 7, v0
         v_bfe_u32 v4, v0, 4, 1
         v_lshlrev_b32 v4, 2, v4
         v_xor_b32 v3, v3, v4
         v_lshl_add_u32 v2, v3, 4, v2""")
    a("s_waitcnt lgkmcnt(0)")
    srd(a, 8, 4, 512*512*2)
    srd(a, 12, 6, 2048*1024*4)
    srd(a, 16, 28, WS_BYTES)
    OFR = 96
    for hh in range(8):
        for n in range(2):
            a(f"s_add_u32 m0, s36, {(2*hh+n)*1024}")
            a(f"s_add_u32 s33, s35, {(2*hh+n)*8192}")
            a.vmem(f"buffer_load_dwordx4 v2, s[8:11], s33 offen lds", ("h", hh))
        for t in range(2):
            a.vmem(f"buffer_load_dwordx4 {vr(OFR+8*hh+4*t,4)}, v1, s[16:19], s{24+2*t+(hh>>2)} offen offset:{(hh&3)*1024}", ("h", hh))
    a("""v_lshrrev_b32 v5, 5, v0
         v_lshlrev_b32 v5, 2, v5
         v_bfe_u32 v6, v0, 2, 2
         v_add_u32 v5, v5, v6
         v_lshlrev_b32 v5, 7, v5
         v_bfe_u32 v6, v0, 3, 1
         v_lshl_add_u32 v5, v6, 6, v5
         v_bfe_u32 v6, v0, 4, 1
         v_lshl_add_u32 v5, v6, 5, v5
         v_and_b32 v6, 3, v0
         v_lshl_add_u32 v5, v6, 3, v5
         v_add_u32 v6, s36, v5
         v_xor_b32 v7, 64, v6""")
    ACC = [32, 48, 64, 80]; WFR = [8, 16]
    def reads(hh):
        a.wait_vm(("h", hh))
        for nb in range(2):
            for q in range(2):
                a.lds(f"ds_read_b64_tr_b16 {vr(WFR[hh&1]+4*nb+2*q,2)}, v{6+nb} offset:{hh*2048+q*1024}", ("r", hh))
    stamp(a, 1)
    reads(0)
    stamp(a, 2)
    for hh in range(8):
        if hh + 1 < 8: reads(hh + 1)
        a.wait_lg(("r", hh))
        for t in range(2):
            for nb in range(2):
                A = ACC[2*t+nb]
                a(f"{MFMA} {vr(A,16)}, {vr(OFR+8*hh+4*t,4)}, {vr(WFR[hh&1]+4*nb,4)}, {'0' if hh==0 else vr(A,16)}")
    a("""s_lshr_b32 s33, s20, 1
         s_lshl_b32 s34, s21, 1
         s_add_u32 s33, s33, s34
         s_lshl_b32 s33, s33, 17
         s_and_b32 s34, s20, 1
         s_lshl_b32 s37, s22, 1
         s_add_u32 s34, s34, s37
         s_lshl_b32 s34, s34, 7
         s_add_u32 s33, s33, s34
         s_add_u32 s38, s33, 2048
         v_lshrrev_b32 v2, 5, v0
         v_lshlrev_b32 v2, 14, v2
         v_and_b32 v3, 31, v0
         v_lshl_add_u32 v2, v3, 2, v2""")
    stamp(a, 3)
    reduce4_and_pick(a, ACC, 1, 16384, 0, lambda: a("s_barrier"))
    stamp(a, 4)
    for r in range(16):
        row = 8*(r >> 2) + (r & 3)
        a(f"s_add_u32 s33, s38, {row*4096}")
        a(f"buffer_store_dword v{ACC[0]+r}, v2, s[12:15], s33 offen")
    stamp(a, 5)
    if STAMP:
        a("s_waitcnt vmcnt(0)")
        stamp(a, 6)
        stamp_flush(a, 7, 16, 2)
    a.label("Lo_end")
    a("s_endpgm")
    return a.text(), 160

SSMB = 81920
SREG = 18432
EXB = SSMB + 4*SREG
CNT = EXB + 3840
LDS_TOTAL = CNT + 64
SPIN = 1 << 16
def ssm_lds_init(a):
    a(f"""v_lshlrev_b32 v2, 4, v0
          v_mov_b32 v4, 0
          v_mov_b32 v5, 0
          v_mov_b32 v6, 0
          v_mov_b32 v7, 0
          v_add_u32 v2, {EXB}, v2
          ds_write_b128 v2, v[4:7]
          ds_write_b128 v2, v[4:7] offset:768
          v_mov_b32 v2, {CNT}
          ds_write_b128 v2, v[4:7]""")

def lds_sync(a, idx, lbl, vA=14, vT=15):
    a(f"""v_mov_b32 v{vA}, {CNT + 4*idx}
          v_mov_b32 v{vT}, 1
          s_mov_b64 exec, 1
          ds_add_u32 v{vA}, v{vT}
          s_mov_b64 exec, -1
          s_mov_b32 s39, {SPIN}""")
    a.label(lbl)
    a(f"""ds_read_b32 v{vT}, v{vA}
          s_sub_u32 s39, s39, 1
          s_cbranch_scc1 {lbl}_x
          s_waitcnt lgkmcnt(0)
          v_readfirstlane_b32 s33, v{vT}
          s_cmp_ge_u32 s33, 4
          s_cbranch_scc0 {lbl}""")
    a.label(lbl + "_x")
    a("s_waitcnt lgkmcnt(0)")
    a.lg = []

def gen_ssm_body(a, pfx):
    a(f"s_load_dwordx8 s[52:59], s[0:1], {A_X}")
    a(f"s_load_dwordx2 s[60:61], s[0:1], {A_BIM}")
    a(f"s_load_dwordx2 s[62:63], s[0:1], {A_LDT}")
    a("""s_setprio 3
         s_and_b32 s30, s2, 7
         s_lshr_b32 s31, s2, 3
         s_lshr_b32 s21, s30, 1
         s_lshl_b32 s21, s21, 2
         s_and_b32 s33, s31, 3
         s_add_u32 s21, s21, s33
         s_and_b32 s22, s30, 1
         s_lshl_b32 s22, s22, 3
         s_lshr_b32 s34, s31, 2
         s_add_u32 s22, s22, s34
         s_lshl_b32 s23, s34, 1
         s_lshl_b32 s33, s33, 2
         s_add_u32 s23, s23, s33""")
    a(f"""s_lshl_b32 s24, s21, 2
          s_add_u32 s24, s24, s20
          s_mov_b32 s29, s24
          s_lshl_b32 s24, s24, 15
          s_lshl_b32 s25, s22, 15
          s_mul_i32 s26, s20, {SREG}
          s_add_u32 s26, s26, {SSMB}""")
    vX, vB, vR = 2, 3, 4
    a(f"""v_lshlrev_b32 v1, 4, v0
          v_and_b32 v8, 3, v0
          v_bfe_u32 v9, v0, 4, 2
          v_xor_b32 v8, v8, v9
          v_lshlrev_b32 v8, 4, v8
          v_lshrrev_b32 v9, 2, v0
          v_lshl_add_u32 v{vB}, v9, 10, v8
          v_bfe_u32 v9, v0, 2, 2
          v_bfe_u32 v10, v0, 4, 1
          v_lshl_add_u32 v9, v10, 4, v9
          v_bfe_u32 v10, v0, 5, 1
          v_lshl_add_u32 v9, v10, 2, v9
          v_lshl_add_u32 v{vX}, v9, 10, v8
          v_and_b32 v8, 31, v0
          v_bfe_u32 v9, v0, 2, 2
          v_lshrrev_b32 v10, 5, v0
          v_xor_b32 v9, v9, v10
          v_lshlrev_b32 v9, 4, v9
          v_lshl_add_u32 v9, v8, 6, v9
          v_add_u32 v{vR}, s26, v9
          v_xor_b32 v9, 32, v9
          v_add_u32 v{vR+1}, s26, v9
          s_lshl_b32 s33, s22, 6
          v_lshl_add_u32 v8, v8, 1, s33""")
    a("s_waitcnt lgkmcnt(0)")
    srd(a, 12, 52, 2048*512*2)
    srd(a, 16, 58, 512*512*2)
    srd(a, 40, 60, 512*512*2)
    PA, PB_, PD = 6, 7, 9
    a.vmem(f"global_load_ushort v{PA}, v8, s[54:55]", "par")
    a.vmem(f"global_load_ushort v{PB_}, v8, s[56:57]", "par")
    a.vmem(f"global_load_ushort v{PD}, v8, s[62:63]", "par")
    def dma1(c):
        base = (c % 3)*6144
        a(f"s_add_u32 s33, s23, {c}")
        a("s_and_b32 s33, s33, 15")
        a("s_lshl_b32 s33, s33, 6")
        a("s_add_u32 s34, s33, s24")
        a("s_add_u32 s35, s33, s25")
        for n in range(2):
            a(f"s_add_u32 m0, s26, {base + n*1024}")
            a(f"s_add_u32 s33, s34, {n*8192}")
            a.vmem(f"buffer_load_dwordx4 v{vX}, s[12:15], s33 offen lds", ("a", c))
        for mat in range(2):
            for n in range(2):
                a(f"s_add_u32 m0, s26, {base + 2048 + mat*2048 + n*1024}")
                a(f"s_add_u32 s33, s35, {n*16384}")
                a.vmem(f"buffer_load_dwordx4 v{vB}, s[{16+24*mat}:{19+24*mat}], s33 offen lds", ("a", c))
    for c in range(3): dma1(c)
    LR, LI, NLI, L16R, L16I, L128R, L128I, LKR, LKI, LSR, LSI, SGR, NSI, NSR, ZR, ZI = range(128, 144)
    a.wait_vm("par")
    a(f"""v_lshlrev_b32 v{PA}, 16, v{PA}
          v_lshlrev_b32 v{PB_}, 16, v{PB_}
          v_lshlrev_b32 v{PD}, 16, v{PD}
          v_mul_f32 v{PD}, {f2h(LOG2E)}, v{PD}
          v_exp_f32 v{PD}, v{PD}
          s_nop 0
          v_cvt_pk_bf16_f32 v{PD}, v{PD}, v{PD}
          v_and_b32 v{PD}, 0xffff0000, v{PD}
          v_mul_f32 v{ZR}, v{PD}, v{PA}
          v_mul_f32 v{ZI}, v{PD}, v{PB_}
          v_mul_f32 v{ZR}, {f2h(LOG2E)}, v{ZR}
          v_mul_f32 v{ZI}, {f2h(0.15915494309189535)}, v{ZI}""")
    def cpow(dr, di, n):
        a(f"""v_mul_f32 v10, {n}, v{ZR}
              v_mul_f32 v11, {n}, v{ZI}
              v_exp_f32 v10, v10
              v_fract_f32 v11, v11
              v_cos_f32 v{dr}, v11
              v_sin_f32 v{di}, v11
              s_nop 0
              v_mul_f32 v{dr}, v10, v{dr}
              v_mul_f32 v{di}, v10, v{di}""")
    cpow(LR, LI, "1.0"); cpow(L16R, L16I, f2h(16.0)); cpow(L128R, L128I, f2h(128.0)); cpow(LKR, LKI, f2h(1024.0))
    a(f"""v_lshrrev_b32 v12, 5, v0
          s_lshl_b32 s33, s20, 1
          v_add_u32 v12, s33, v12
          v_lshlrev_b32 v13, 4, v12
          v_cvt_f32_u32 v13, v13""")
    cpow(LSR, LSI, "v13")
    a(f"""v_sub_f32 v{NLI}, 0, v{LI}
          v_mul_f32 v10, v{PA}, v{PA}
          v_fmac_f32 v10, v{PB_}, v{PB_}
          v_rcp_f32 v10, v10
          v_subrev_f32 v11, 1.0, v{LR}
          v_add_f32 v10, v10, v10
          v_mul_f32 v{SGR}, v11, v{PA}
          v_fmac_f32 v{SGR}, v{LI}, v{PB_}
          v_mul_f32 v{NSI}, v11, v{PB_}
          v_fmac_f32 v{NSI}, v{NLI}, v{PA}
          v_mul_f32 v{SGR}, v10, v{SGR}
          v_mul_f32 v{NSI}, v10, v{NSI}
          v_sub_f32 v{NSR}, 0, v{SGR}""")
    stamp(a, 1)
    UR, UI = 16, 32
    FR = [48, 72]
    def reads1(c):
        a.wait_vm(("a", c))
        for mat in range(3):
            for s in range(2):
                a.lds(f"ds_read_b128 {vr(FR[c&1]+8*mat+4*s,4)}, v{vR+s} offset:{(c%3)*6144 + mat*2048}", ("r", c))
    reads1(0)
    for c in range(16):
        if c + 1 < 16: reads1(c + 1)
        a.wait_lg(("r", c))
        if c + 3 < 16: dma1(c + 3)
        F = FR[c & 1]
        for s in range(2):
            z = c == 0 and s == 0
            a(f"{MFMA} {vr(UR,16)}, {vr(F+4*s,4)}, {vr(F+8+4*s,4)}, {'0' if z else vr(UR,16)}")
            a(f"{MFMA} {vr(UI,16)}, {vr(F+4*s,4)}, {vr(F+16+4*s,4)}, {'0' if z else vr(UI,16)}")
    stamp(a, 2)
    a(f"s_load_dwordx4 s[52:55], s[0:1], {A_CRE}")
    a(f"s_load_dwordx2 s[56:57], s[0:1], {A_DSK}")
    a(f"s_load_dwordx2 s[58:59], s[0:1], {OUT}")
    a("""s_lshl_b32 s27, s30, 2
         s_and_b32 s33, s31, 3
         s_add_u32 s27, s27, s33
         s_lshr_b32 s28, s31, 2
         s_lshl_b32 s36, s28, 16
         s_lshl_b32 s33, s20, 8
         s_add_u32 s36, s36, s33""")
    a("s_waitcnt lgkmcnt(0)")
    srd(a, 16, 52, 512*512*2)
    srd(a, 40, 54, 512*512*2)
    srd(a, 48, 58, 2048*1024*4)
    def dma2(g):
        pbi, mat = g >> 1, g & 1
        for n in range(4):
            a(f"s_add_u32 m0, s26, {(g & 3)*4096 + n*1024}")
            a(f"s_add_u32 s33, s36, {n*16384 + pbi*64}")
            a.vmem(f"buffer_load_dwordx4 v{vB}, s[{16+24*mat}:{19+24*mat}], s33 offen lds", ("c", g))
    for g in range(4): dma2(g)
    E = [(48, 49), (50, 51)]
    pr, pi = UR, UI
    for r in range(1, 16):
        er, ei = E[r & 1]
        a(f"v_fma_f32 v{er}, v{LR}, v{pr}, v{UR+r}")
        a(f"v_fma_f32 v{ei}, v{LR}, v{pi}, v{UI+r}")
        a(f"v_fmac_f32 v{er}, v{NLI}, v{pi}")
        a(f"v_fmac_f32 v{ei}, v{LI}, v{pr}")
        pr, pi = er, ei
    a(f"""s_lshl_b32 s33, s20, 9
          s_add_u32 s33, s33, {EXB + 7*256}
          v_lshl_add_u32 v10, v0, 3, s33
          ds_write_b64 v10, v[50:51]
          v_and_b32 v11, 31, v0
          v_lshlrev_b32 v11, 3, v11
          v_lshl_add_u32 v10, v12, 8, v11
          v_add_u32 v10, {EXB}, v10
          s_waitcnt lgkmcnt(0)""")
    lds_sync(a, 0, pfx + "_s0")
    for i in range(7): a(f"ds_read_b64 {vr(52+2*i,2)}, v10 offset:{i*256}")
    def horner(dst, src0, n, mr, mi, tmp):
        pr, pi = src0, src0 + 1
        for i in range(1, n):
            er, ei = (dst, dst + 1) if i == n - 1 else (tmp + 2*(i & 1), tmp + 2*(i & 1) + 1)
            a(f"v_fma_f32 v{er}, v{mr}, v{pr}, v{src0+2*i}")
            a(f"v_fma_f32 v{ei}, v{mr}, v{pi}, v{src0+2*i+1}")
            a(f"v_fma_f32 v{er}, -v{mi}, v{pi}, v{er}")
            a(f"v_fmac_f32 v{ei}, v{mi}, v{pr}")
            pr, pi = er, ei
    a("s_waitcnt lgkmcnt(0)")
    PIN = 68
    horner(PIN, 52, 7, L16R, L16I, 72)
    a(f"""v_fma_f32 v70, v{L16R}, v{PIN}, v50
          v_fma_f32 v71, v{L16R}, v{PIN+1}, v51
          v_fma_f32 v70, -v{L16I}, v{PIN+1}, v70
          v_fmac_f32 v71, v{L16I}, v{PIN}
          v_max_f32 v70, v70, v70
          v_max_f32 v71, v71, v71
          s_lshl_b32 s34, s22, 13
          s_lshl_b32 s33, s21, 8
          s_add_u32 s34, s34, s33
          s_add_u32 s34, s34, {EB}
          s_add_u32 s35, s34, 4096
          s_cmp_eq_u32 s20, 3
          s_cbranch_scc0 {pfx}_nopub
          s_mov_b32 exec_lo, 0
          buffer_store_dwordx2 v[70:71], v11, s[8:11], s35 offen sc1
          s_mov_b32 exec_lo, -1""")
    a.label(pfx + "_nopub")
    stamp(a, 3)
    a(f"""v_lshrrev_b32 v10, 5, v0
          v_lshl_add_u32 v10, v10, 11, v11
          s_mov_b32 s39, {SPIN}""")
    a.label(pfx + "_ep")
    for i in range(8): a(f"buffer_load_dwordx2 {vr(48+2*i,2)}, v10, s[8:11], s34 offen offset:{i*256} sc1")
    a(f"""s_sub_u32 s39, s39, 1
          s_cbranch_scc1 {pfx}_ex
          s_waitcnt vmcnt(0)
          v_max3_u32 v13, v48, v49, v50""")
    for i in range(51, 63, 2): a(f"v_max3_u32 v13, v{i}, v{i+1}, v13")
    a(f"""v_max_u32 v13, v63, v13
          v_cmp_eq_u32 vcc, -1, v13
          s_and_b64 vcc, exec, vcc
          s_cbranch_vccz {pfx}_ex
          s_sleep 4
          s_branch {pfx}_ep""")
    a.label(pfx + "_ex")
    a.wait_vm0()
    stamp(a, 4)
    horner(64, 48, 8, L128R, L128I, 72)
    a(f"""v_mov_b32 v66, v64
          v_mov_b32 v67, v65
          s_nop 1
          v_permlane32_swap_b32 v64, v66
          v_permlane32_swap_b32 v65, v67
          s_nop 1
          v_fma_f32 v66, v{LKR}, v64, v66
          v_fma_f32 v67, v{LKR}, v65, v67
          v_fma_f32 v66, -v{LKI}, v65, v66
          v_fmac_f32 v67, v{LKI}, v64
          v_fmac_f32 v{PIN}, v{LSR}, v66
          v_fmac_f32 v{PIN+1}, v{LSR}, v67
          v_fma_f32 v{PIN}, -v{LSI}, v67, v{PIN}
          v_fmac_f32 v{PIN+1}, v{LSI}, v66""")
    HR, HI = 48, 56
    pr, pi = PIN, PIN + 1
    for r in range(16):
        a(f"v_fmac_f32 v{UR+r}, v{LR}, v{pr}")
        a(f"v_fmac_f32 v{UI+r}, v{LR}, v{pi}")
        a(f"v_fmac_f32 v{UR+r}, v{NLI}, v{pi}")
        a(f"v_fmac_f32 v{UI+r}, v{LI}, v{pr}")
        pr, pi = UR + r, UI + r
        t = 72 + 2*(r & 1)
        a(f"v_mul_f32 v{t}, v{SGR}, v{pr}")
        a(f"v_mul_f32 v{t+1}, v{NSI}, v{pr}")
        a(f"v_fmac_f32 v{t}, v{NSI}, v{pi}")
        a(f"v_fmac_f32 v{t+1}, v{NSR}, v{pi}")
        if r & 1:
            a(f"v_cvt_pk_bf16_f32 v{HR+(r>>1)}, v72, v74")
            a(f"v_cvt_pk_bf16_f32 v{HI+(r>>1)}, v73, v75")
    a(f"""v_and_b32 v10, 31, v0
          v_lshlrev_b32 v10, 6, v10
          v_lshrrev_b32 v11, 5, v0
          v_lshl_add_u32 v10, v11, 5, v10
          s_add_u32 s33, s26, 16384
          v_add_u32 v10, s33, v10
          v_lshlrev_b32 v11, 3, v11
          v_bfe_u32 v13, v0, 2, 2
          v_add_u32 v11, v11, v13
          v_lshlrev_b32 v11, 6, v11
          v_bfe_u32 v13, v0, 4, 1
          v_lshl_add_u32 v11, v13, 5, v11
          v_and_b32 v13, 3, v0
          v_lshl_add_u32 v11, v13, 3, v11
          v_add_u32 v11, s33, v11
          s_lshl_b32 s34, s29, 4
          s_add_u32 s34, s34, s22
          s_lshl_b32 s35, s34, 2
          s_add_u32 s35, s35, {FH}
          s_lshl_b32 s34, s34, 12
          s_add_u32 s34, s34, {HF}""")
    HT = 76
    for mat, H in enumerate((HR, HI)):
        a(f"ds_write_b128 v10, {vr(H,4)}")
        a(f"ds_write_b128 v10, {vr(H+4,4)} offset:16")
        for sp in range(2):
            for q in range(2):
                a(f"ds_read_b64_tr_b16 {vr(HT+8*mat+4*sp+2*q,2)}, v11 offset:{(16*sp+4*q)*64}")
    a("s_waitcnt lgkmcnt(4)")
    for sp in range(2): a(f"buffer_store_dwordx4 {vr(HT+4*sp,4)}, v1, s[8:11], s34 offen offset:{sp*1024} sc1")
    a("s_waitcnt lgkmcnt(0)")
    for sp in range(2): a(f"buffer_store_dwordx4 {vr(HT+8+4*sp,4)}, v1, s[8:11], s34 offen offset:{2048+sp*1024} sc1")
    a(f"""v_mov_b32 v13, 1
          v_mov_b32 v10, 0
          s_waitcnt vmcnt(0)
          s_mov_b64 exec, 1
          buffer_store_dword v13, v10, s[8:11], s35 offen sc1
          s_mov_b64 exec, -1""")
    stamp(a, 5)
    a(f"""v_bfe_u32 v10, v0, 2, 1
          v_lshlrev_b32 v10, 4, v10
          v_and_b32 v11, 3, v0
          v_add_lshl_u32 v10, v10, v11, 2
          s_lshl_b32 s33, s27, 7
          s_lshl_b32 s34, s20, 4
          s_add_u32 s34, s34, s33
          s_add_u32 s34, s34, {FH}
          s_mov_b32 s39, {SPIN}""")
    a.label(pfx + "_hp")
    a(f"""buffer_load_dword v13, v10, s[8:11], s34 offen sc1
          s_sub_u32 s39, s39, 1
          s_cbranch_scc1 {pfx}_hx
          s_waitcnt vmcnt(0)
          v_cmp_ne_u32 vcc, 1, v13
          s_and_b64 vcc, exec, vcc
          s_cbranch_vccz {pfx}_hx
          s_sleep 4
          s_branch {pfx}_hp""")
    a.label(pfx + "_hx")
    a.wait_vm0()
    stamp(a, 6)
    a(f"""s_lshl_b32 s24, s27, 17
          s_lshl_b32 s33, s20, 14
          s_add_u32 s24, s24, s33
          s_add_u32 s24, s24, {HF}""")
    ACC = [16, 32, 48, 64]; HFR = 80; CF = 144
    def ldh(g):
        for half in range(2):
            for t in range(2):
                k = 2*g + half
                a(f"s_add_u32 s33, s24, {t*65536 + (k>>2)*4096}")
                a.vmem(f"buffer_load_dwordx4 {vr(HFR+16*(g&3)+8*half+4*t,4)}, v1, s[8:11], s33 offen offset:{(k&3)*1024} sc1", ("h", g))
    for g in range(4): ldh(g)
    for g in range(8):
        a.wait_vm([("c", g), ("h", g)])
        for half in range(2):
            for b in range(2):
                a.lds(f"ds_read_b128 {vr(CF+8*half+4*b,4)}, v{vR+half} offset:{(g&3)*4096 + b*2048}", ("r", half))
        for half in range(2):
            a.wait_lg(("r", half))
            if half == 1 and g + 4 < 8: dma2(g + 4)
            for t in range(2):
                for b in range(2):
                    A = ACC[2*t+b]
                    a(f"{MFMA} {vr(A,16)}, {vr(HFR+16*(g&3)+8*half+4*t,4)}, {vr(CF+8*half+4*b,4)}, {'0' if g==0 and half==0 else vr(A,16)}")
        if g + 4 < 8: ldh(g + 4)
    stamp(a, 7)
    a("""s_lshr_b32 s33, s20, 1
         s_lshl_b32 s34, s27, 1
         s_add_u32 s33, s33, s34
         s_and_b32 s34, s20, 1
         s_lshl_b32 s35, s28, 1
         s_add_u32 s34, s34, s35
         s_lshl_b32 s37, s33, 17
         s_lshl_b32 s35, s34, 7
         s_add_u32 s37, s37, s35
         s_lshl_b32 s38, s33, 15
         s_lshl_b32 s35, s34, 6
         s_add_u32 s38, s38, s35
         v_and_b32 v3, 31, v0
         v_lshrrev_b32 v10, 5, v0
         v_lshlrev_b32 v2, 14, v10
         v_lshl_add_u32 v2, v3, 2, v2
         v_lshlrev_b32 v10, 12, v10
         v_lshl_add_u32 v10, v3, 1, v10
         v_lshl_add_u32 v11, v3, 1, s35""")
    XS = 96
    a(f"global_load_ushort v{XS+16}, v11, s[56:57]")
    for r in range(16):
        row = 8*(r >> 2) + (r & 3)
        a(f"s_add_u32 s33, s38, {(row>>2)*4096}")
        a(f"buffer_load_ushort v{XS+r}, v10, s[12:15], s33 offen offset:{(row&3)*1024}")
    reduce4_and_pick(a, ACC, 1, SREG, SSMB, lambda: lds_sync(a, 1, pfx + "_s1"))
    a("s_waitcnt vmcnt(0)")
    a(f"v_lshlrev_b32 v{XS+16}, 16, v{XS+16}")
    for r in range(16):
        row = 8*(r >> 2) + (r & 3)
        a(f"v_lshlrev_b32 v{XS+r}, 16, v{XS+r}")
        a(f"s_add_u32 s33, s37, {row*4096}")
        a(f"v_fmac_f32 v{ACC[0]+r}, v{XS+r}, v{XS+16}")
        a(f"buffer_store_dword v{ACC[0]+r}, v2, s[48:51], s33 offen")
    stamp(a, 8)
    stamp_flush(a, 9, 8, 3)
    a("s_endpgm")

def gen_ssm():
    a = Asm()
    a("s_cmp_ge_u32 s2, 256")
    a("s_cbranch_scc1 Ls_end")
    stamp(a, 0)
    a(f"s_load_dwordx2 s[4:5], s[0:1], {WS}")
    wave_id(a, 20)
    ssm_lds_init(a)
    a("s_waitcnt lgkmcnt(0)")
    a("s_barrier")
    srd(a, 8, 4, WS_BYTES)
    gen_ssm_body(a, "Ls")
    a.label("Ls_end")
    a("s_endpgm")
    return a.text(), 168

HEADER = open("concat_heads__ssm_conv_s5__mha_block__prompt.s.ref").read().split("; Override launch")[0]

def build(kernels, launches):
    s = HEADER
    for (name, grid, block, lds) in launches:
        s += f"; @launch kernel={name} grid=({grid},1,1) block=({block},1,1) lds={lds}\n"
    s += '.amdgcn_target "amdgcn-amd-amdhsa--gfx950"\n'
    for name, (txt, vg) in kernels.items():
        s += kernel_head(name) + txt
    for name, (txt, vg) in kernels.items():
        s += kernel_desc(name, vg)
    return s

if __name__ == "__main__":
    out = sys.argv[1] if len(sys.argv) > 1 else "out.s"
    STAMP = "stamp" in sys.argv[2:]
    if "hdiag" in sys.argv[2:]:
        STAMP = True
        HDIAG = {0: (0, 2, 6, 0), 1: (1, 2, 7, 0), 2: (2, 2, 6, 0), 3: (3, 2, 8, 1)}
    kernels = {"qkv_kernel": gen_qkv(), "attn_kernel": gen_attn(), "wo_kernel": gen_wo(), "ssm_kernel": gen_ssm()}
    launches = [("qkv_kernel", 256, 256, 163840), ("attn_kernel", 256, 512, 81920), ("wo_kernel", 256, 256, 65536), ("ssm_kernel", 256, 256, LDS_TOTAL)]
    open(out, "w").write(build(kernels, launches))
```

```python
import sys, struct
from asmlib import *

MB = 1 << 20
QF, KF, VF, OF, HF = 0, 2*MB, 4*MB, 6*MB, 8*MB
EB = 12*MB
FH = EB + 128*1024
FST = 4352
WS_BYTES = 16*MB
A_X, A_LRE, A_LIM, A_BRE, A_BIM, A_CRE, A_CIM, A_LDT, A_DSK, B_X, B_WQKV, B_WO, OUT, DBG, WS = [8*i for i in range(15)]
MFMA = "v_mfma_f32_32x32x16_bf16"
def f2h(x): return "0x%08x" % struct.unpack("<I", struct.pack("<f", x))[0]
LOG2E = 1.4426950408889634

STAMP = False
STB = 14*MB
HDIAG = None
def stamp(a, i):
    if STAMP: a(f"s_memtime s[{64+2*i}:{65+2*i}]")
    if STAMP and HDIAG and i == 0: a("s_memrealtime s[92:93]")
def stamp_flush(a, n, srdreg, kidx, vt=8):
    if not STAMP: return
    if HDIAG:
        li, sa, sb, last = HDIAG[kidx]
        a(f"""s_memrealtime s[94:95]
              s_load_dwordx2 s[60:61], s[0:1], {DBG}
              s_waitcnt lgkmcnt(0)
              s_or_b32 s62, s2, s20
              s_cmp_eq_u32 s62, 0
              s_cbranch_scc0 Lhd{kidx}
              s_sub_u32 s62, s{64+2*sa}, s64
              s_sub_u32 s63, s{64+2*sb}, s64
              s_mov_b64 exec, 1
              v_mov_b32 v{vt}, s92
              v_mov_b32 v{vt+1}, s94
              v_mov_b32 v{vt+2}, s62
              v_mov_b32 v{vt+3}, s63
              v_mov_b32 v{vt+4}, {STB + 16*li}
              buffer_store_dwordx4 v[{vt}:{vt+3}], v{vt+4}, s[{srdreg}:{srdreg+3}], 0 offen
              s_waitcnt vmcnt(0)""")
        if last:
            a(f"""s_mov_b64 exec, 0xffff
                  v_lshlrev_b32 v{vt+4}, 2, v0
                  v_add_u32 v{vt}, {STB}, v{vt+4}
                  buffer_load_dword v{vt+1}, v{vt}, s[{srdreg}:{srdreg+3}], 0 offen sc1
                  s_waitcnt vmcnt(0)
                  global_store_dword v{vt+4}, v{vt+1}, s[60:61]
                  s_sub_u32 s60, s60, {li*512}
                  s_subb_u32 s61, s61, 0
                  global_store_dword v{vt+4}, v{vt+1}, s[60:61]
                  s_waitcnt vmcnt(0)""")
        a.label(f"Lhd{kidx}")
        return
    a("s_memrealtime s[94:95]")
    a("s_waitcnt lgkmcnt(0)")
    a("s_mov_b64 exec, 1")
    a("s_lshl_b32 s60, s2, 4")
    a("s_add_u32 s60, s60, s20")
    a("s_lshl_b32 s60, s60, 6")
    a(f"s_add_u32 s60, s60, {STB + kidx*262144}")
    a(f"v_mov_b32 v{vt}, 0")
    for i in range(n):
        a(f"v_mov_b32 v{vt+1}, s{64+2*i}")
        a(f"buffer_store_dword v{vt+1}, v{vt}, s[{srdreg}:{srdreg+3}], s60 offen offset:{4*i}")
    a("s_getreg_b32 s61, hwreg(HW_REG_HW_ID)")
    a(f"v_mov_b32 v{vt+1}, s61")
    a(f"buffer_store_dword v{vt+1}, v{vt}, s[{srdreg}:{srdreg+3}], s60 offen offset:56")
    a(f"v_mov_b32 v{vt+1}, s94")
    a(f"buffer_store_dword v{vt+1}, v{vt}, s[{srdreg}:{srdreg+3}], s60 offen offset:60")
    a("s_waitcnt vmcnt(0)")

def wave_id(a, sdst, vtmp=1):
    a(f"v_lshrrev_b32 v{vtmp}, 6, v0")
    a("v_and_b32 v0, 63, v0")
    a(f"v_readfirstlane_b32 s{sdst}, v{vtmp}")

def gen_qkv():
    a = Asm()
    a("s_cmp_ge_u32 s2, 256")
    a("s_cbranch_scc1 Lq_end")
    stamp(a, 0)
    a(f"s_load_dwordx4 s[4:7], s[0:1], {B_X}")
    a(f"s_load_dwordx2 s[28:29], s[0:1], {WS}")
    wave_id(a, 20)
    a("""s_and_b32 s30, s2, 7
         s_lshr_b32 s31, s2, 3
         s_lshr_b32 s21, s30, 1
         s_lshl_b32 s21, s21, 2
         s_and_b32 s33, s31, 3
         s_add_u32 s21, s21, s33
         s_and_b32 s22, s30, 1
         s_lshl_b32 s22, s22, 3
         s_lshr_b32 s34, s31, 2
         s_add_u32 s22, s22, s34
         s_lshl_b32 s33, s33, 1
         s_add_u32 s23, s34, s33""")
    a("""s_lshl_b32 s24, s21, 2
         s_add_u32 s24, s24, s20
         s_mov_b32 s35, s24
         s_lshl_b32 s24, s24, 15
         s_mul_i32 s25, s20, 49152
         s_lshl_b32 s33, s22, 6
         s_add_u32 s25, s25, s33
         s_lshl_b32 s26, s20, 14
         s_mul_i32 s27, s20, 3072
         s_add_u32 s27, s27, 65536""")
    for c in range(8):
        a(f"s_add_u32 s33, s23, {c}")
        a("s_and_b32 s33, s33, 7")
        a("s_lshl_b32 s34, s33, 7")
        a(f"s_add_u32 s{40+c}, s24, s34")
        a("s_mul_i32 s34, s33, 196608")
        a(f"s_add_u32 s{48+c}, s25, s34")
    vXa, vXb, vWd, vXr, vWr = 2, 3, 4, 8, 12
    T = 14
    a(f"""v_lshrrev_b32 v{T}, 3, v0
          v_lshlrev_b32 v{T}, 10, v{T}
          v_and_b32 v{T+1}, 7, v0
          v_lshrrev_b32 v{T+2}, 4, v0
          v_xor_b32 v{T+1}, v{T+1}, v{T+2}
          v_lshl_add_u32 v{vXa}, v{T+1}, 4, v{T}
          v_xor_b32 v{vXb}, 64, v{vXa}""")
    for n in range(3):
        a(f"""v_add_u32 v{T}, {64*n}, v0
              v_mul_u32_u24 v{T+1}, 5462, v{T}
              v_lshrrev_b32 v{T+1}, 16, v{T+1}
              v_mul_u32_u24 v{T+2}, 12, v{T+1}
              v_sub_u32 v{T}, v{T}, v{T+2}
              v_mul_u32_u24 v{T+1}, 3072, v{T+1}
              v_lshrrev_b32 v{T+2}, 2, v{T}
              v_lshl_add_u32 v{T+1}, v{T+2}, 10, v{T+1}
              v_and_b32 v{T}, 3, v{T}
              v_lshl_add_u32 v{vWd+n}, v{T}, 4, v{T+1}""")
    a("s_waitcnt lgkmcnt(0)")
    srd(a, 8, 4, 2048*512*2)
    srd(a, 12, 6, 512*1536*2)
    srd(a, 16, 28, WS_BYTES)
    def dma_w(c):
        for n in range(3):
            a(f"s_add_u32 m0, s27, {c*12288 + n*1024}")
            a("s_nop 0")
            a.vmem(f"buffer_load_dwordx4 v{vWd+n}, s[12:15], s{48+c} offen lds", ("w", c))
    def dma_x(c):
        for n in range(4):
            a(f"s_add_u32 m0, s26, {(c&3)*4096 + n*1024}")
            a(f"s_add_u32 s33, s{40+c}, {n*8192}")
            a.vmem(f"buffer_load_dwordx4 v{vXa if n%2==0 else vXb}, s[8:11], s33 offen lds", ("x", c))
    for c in range(4):
        dma_w(c); dma_x(c)
    for c in range(4, 8):
        dma_w(c)
    a(f"""v_and_b32 v{T}, 31, v0
          v_lshrrev_b32 v{T+1}, 1, v{T}
          v_and_b32 v{T+1}, 7, v{T+1}
          v_lshrrev_b32 v{T+2}, 5, v0
          v_xor_b32 v{T+1}, v{T+1}, v{T+2}
          v_lshlrev_b32 v{T+1}, 4, v{T+1}
          v_lshl_add_u32 v{T}, v{T}, 7, s26""")
    for s in range(4):
        a(f"v_xor_b32 v{T+3}, {32*s}, v{T+1}")
        a(f"v_add_u32 v{vXr+s}, v{T}, v{T+3}")
    a(f"""v_lshlrev_b32 v{T}, 3, v{T+2}
          v_bfe_u32 v{T+1}, v0, 2, 2
          v_add_u32 v{T}, v{T}, v{T+1}
          v_mul_u32_u24 v{T}, 192, v{T}
          v_bfe_u32 v{T+1}, v0, 4, 1
          v_lshl_add_u32 v{T}, v{T+1}, 5, v{T}
          v_and_b32 v{T+1}, 3, v0
          v_lshl_add_u32 v{T}, v{T+1}, 3, v{T}
          v_add_u32 v{vWr}, 0x10000, v{T}
          v_add_u32 v{vWr+1}, 0x1c000, v{T}""")
    ACC = [32, 48, 64]; XF = [80, 84]; WF = [88, 100]
    def reads(t):
        c, s, b = t >> 2, t & 3, t & 1
        a.lds(f"ds_read_b128 {vr(XF[b],4)}, v{vXr+s} offset:{(c&3)*4096}", ("r", t))
        for sec in range(3):
            for q in range(2):
                off = (c & 3)*12288 + (16*s + 4*q)*192 + 64*sec
                a.lds(f"ds_read_b64_tr_b16 {vr(WF[b]+4*sec+2*q,2)}, v{vWr+(c>>2)} offset:{off}", ("r", t))
    def chunk_ready(c):
        a.wait_vm([("w", c), ("x", c)])
        a("s_barrier")
    stamp(a, 1)
    chunk_ready(0)
    stamp(a, 2)
    reads(0)
    for t in range(32):
        c, s, b = t >> 2, t & 3, t & 1
        if t + 1 < 32:
            if s == 3: chunk_ready(c + 1)
            reads(t + 1)
        a.wait_lg(("r", t))
        cin = lambda i: ("0" if t == 0 else vr(ACC[i], 16))
        a(f"{MFMA} {vr(ACC[0],16)}, {vr(WF[b],4)}, {vr(XF[b],4)}, {cin(0)}")
        a(f"{MFMA} {vr(ACC[1],16)}, {vr(WF[b]+4,4)}, {vr(XF[b],4)}, {cin(1)}")
        a(f"{MFMA} {vr(ACC[2],16)}, {vr(XF[b],4)}, {vr(WF[b]+8,4)}, {cin(2)}")
        if s == 3 and c + 4 < 8: dma_x(c + 4)
        if t == 15: stamp(a, 3)
    stamp(a, 4)
    a(f"""v_lshlrev_b32 v2, 4, v0
          v_bfe_u32 v3, v0, 4, 1
          v_lshlrev_b32 v3, 16, v3
          v_lshrrev_b32 v4, 5, v0
          v_lshl_add_u32 v3, v4, 8, v3
          v_and_b32 v4, 15, v0
          v_lshl_add_u32 v3, v4, 4, v3
          s_lshl_b32 s33, s22, 17
          s_lshl_b32 s34, s35, 10
          s_add_u32 s33, s33, s34
          s_add_u32 s36, s33, {QF}
          s_add_u32 s37, s33, {QF+65536}
          s_add_u32 s38, s33, {KF}
          s_add_u32 s39, s33, {KF+65536}
          s_add_u32 s34, s33, {VF}""")
    sc = f2h(0.25*LOG2E)
    for r in range(16): a(f"v_mul_f32 v{ACC[0]+r}, {sc}, v{ACC[0]+r}")
    P = 80
    for j in range(8): a(f"v_cvt_pk_bf16_f32 v{P+j}, v{ACC[0]+2*j}, v{ACC[0]+2*j+1}")
    a(f"buffer_store_dwordx4 {vr(P,4)}, v2, s[16:19], s36 offen")
    a(f"buffer_store_dwordx4 {vr(P+4,4)}, v2, s[16:19], s37 offen")
    for j in range(8): a(f"v_cvt_pk_bf16_f32 v{P+8+j}, v{ACC[1]+2*j}, v{ACC[1]+2*j+1}")
    a(f"buffer_store_dwordx4 {vr(P+8,4)}, v2, s[16:19], s38 offen")
    a(f"buffer_store_dwordx4 {vr(P+12,4)}, v2, s[16:19], s39 offen")
    for j in range(8): a(f"v_cvt_pk_bf16_f32 v{P+16+j}, v{ACC[2]+2*j}, v{ACC[2]+2*j+1}")
    a(f"buffer_store_dwordx4 {vr(P+16,4)}, v3, s[16:19], s34 offen")
    a(f"buffer_store_dwordx4 {vr(P+20,4)}, v3, s[16:19], s34 offen offset:512")
    stamp(a, 5)
    if STAMP:
        a("s_waitcnt vmcnt(0)")
        stamp(a, 6)
        stamp_flush(a, 7, 16, 0, vt=120)
        a("s_mov_b64 exec, -1")
    a(f"""s_cmp_gt_u32 s20, 1
          s_cbranch_scc1 Lq_end
          s_bfe_u32 s33, s2, 0x10003
          s_sub_u32 s33, 0, s33
          s_lshl_b32 s34, s2, 9
          s_add_u32 s34, s34, {EB}
          s_lshr_b32 s36, s2, 3
          s_mul_i32 s36, s36, {FST}
          s_and_b32 s37, s2, 7
          s_lshl_b32 s37, s37, 4
          s_add_u32 s36, s36, s37
          s_add_u32 s36, s36, {FH}
          s_cmp_eq_u32 s20, 0
          s_cselect_b32 s33, s33, 0
          s_cselect_b32 s34, s34, s36
          s_cselect_b32 exec_lo, -1, 1
          s_mov_b32 exec_hi, 0
          v_mov_b32 v8, s33
          v_mov_b32 v9, s33
          v_mov_b32 v10, s33
          v_mov_b32 v11, s33
          buffer_store_dwordx4 v[8:11], v2, s[16:19], s34 offen""")
    a.label("Lq_end")
    a("s_endpgm")
    return a.text(), 128

KR, VR_, S0, S1, PR, OR_, QA, QB = 8, 40, 104, 120, 136, 144, 160, 164
SLOT = 1152; QSL = 8*SLOT; QLDS = 8*QSL
RED = 0
ONES = "0x3f803f80"
def gen_attn_body(a, pfx):
    a("""s_and_b32 s30, s2, 7
         s_lshr_b32 s31, s2, 3
         s_lshl_b32 s21, s30, 2
         s_lshr_b32 s33, s31, 3
         s_add_u32 s21, s21, s33
         s_and_b32 s22, s31, 7""")
    a(f"""s_lshl_b32 s33, s21, 16
          s_lshl_b32 s34, s20, 13
          s_add_u32 s34, s34, s33
          s_add_u32 s24, s34, {KF}
          s_add_u32 s25, s34, {KF+4096}
          s_add_u32 s26, s34, {VF}
          s_add_u32 s27, s34, {VF+4096}
          s_lshl_b32 s34, s22, 13
          s_add_u32 s28, s34, s33
          s_add_u32 s28, s28, {QF}""")
    a("""v_lshlrev_b32 v1, 4, v0
         v_lshrrev_b32 v2, 5, v0
         v_lshlrev_b32 v2, 8, v2
         v_and_b32 v7, 15, v0
         v_lshl_add_u32 v2, v7, 4, v2
         s_mul_i32 s33, s20, 1152
         v_add_u32 v3, s33, v1
         v_and_b32 v7, 31, v0
         v_lshl_add_u32 v5, v7, 2, s33
         s_lshl_b32 s33, s20, 10
         s_add_u32 s29, s28, s33
         s_add_u32 s33, s33, QLDS_
         v_add_u32 v6, s33, v1""".replace("QLDS_", str(QLDS)))
    def ldk(kt):
        a.vmem(f"buffer_load_dwordx4 {vr(KR+4*kt,4)}, v1, s[8:11], s{24+(kt>>2)} offen offset:{(kt&3)*1024}", ("K", kt))
    def ldv(kt):
        a("s_mov_b64 exec, s[36:37]")
        for m in range(2):
            a.vmem(f"buffer_load_dwordx4 {vr(VR_+8*kt+4*m,4)}, v2, s[8:11], s{26+(kt>>2)} offen offset:{(kt&3)*1024+m*512}", ("V", kt, m))
        a("s_mov_b64 exec, -1")
    def ones(kt):
        for r in range(8): a(f"v_mov_b32 v{VR_+8*kt+r}, v4")
    a("s_mov_b32 s36, 0xffff")
    a("s_mov_b32 s37, 0xffff")
    a("s_setprio 3")
    a.vmem(f"buffer_load_dwordx4 {vr(QA,4)}, v1, s[8:11], s28 offen", ("Q", 0))
    ldk(0); ldk(1)
    a(f"""v_and_b32 v7, 27, v0
          v_cmp_eq_u32 vcc, 16, v7
          v_mov_b32 v4, {ONES}
          s_nop 0
          v_cndmask_b32 v4, 0, v4, vcc""")
    ones(0); ldv(0)
    a.vmem(f"buffer_load_dwordx4 {vr(QB,4)}, v1, s[8:11], s29 offen", ("Q", 1))
    for kt in range(1, 8): ones(kt)
    ldk(2); ldv(1)
    stamp(a, 1)
    SB = [S0, S1]
    def step(i, Qcur, Qnext, first, drain_off, last_body, q_off):
        S = SB[i & 1]; Sn = SB[(i + 1) & 1]
        E = lambda r: a(f"v_exp_f32 v{S+r}, v{S+r}")
        C = lambda j: a(f"v_cvt_pk_bf16_f32 v{PR+j}, v{S+2*j}, v{S+2*j+1}")
        def pv(kt, m, zero=False):
            a.wait_vm(("V", kt, m))
            a(f"{MFMA} {vr(OR_,16)}, {vr(VR_+8*kt+4*m,4)}, {vr(PR+4*m,4)}, {'0' if zero else vr(OR_,16)}")
        if i < 7:
            a.wait_vm(("K", i + 1))
            a(f"{MFMA} {vr(Sn,16)}, {vr(KR+4*(i+1),4)}, {vr(Qcur,4)}, 0")
        elif not last_body:
            a("s_waitcnt lgkmcnt(0)")
            a(f"{MFMA} {vr(Sn,16)}, {vr(KR,4)}, {vr(Qnext,4)}, 0")
        if first:
            if i + 3 < 8: ldk(i + 3)
            if i + 2 < 8: ldv(i + 2)
        if first and i == 1:
            a.wait_vm(("Q", 1))
            a(f"ds_write_b128 v6, {vr(QB,4)}")
            a(f"v_add_u32 v6, {QLDS}, v1")
        if first and i in (2, 4): a(f"s_setprio {2 if i == 2 else 1}")
        if first and i == 5:
            a("s_waitcnt lgkmcnt(0)")
            a("s_barrier")
        if i == 5 and not last_body:
            a(f"ds_read_b128 {vr(Qnext,4)}, v6 offset:{q_off}")
        E(0); E(1); E(2); E(3); C(0); E(4); E(5)
        if not (i == 0 and first): pv((i - 1) & 7, 1)
        C(1); E(6); E(7); C(2); E(8); C(3); E(9); E(10)
        if i != 0: pv(i, 0)
        E(11); C(4); E(12); E(13); C(5); E(14)
        if i == 0:
            if not first: drain(S, drain_off)
            pv(0, 0, zero=True)
        E(15); C(6); C(7)
    def drain(T, off):
        for j in range(4): a(f"v_cvt_pk_bf16_f32 v{T+j}, v{OR_+2*j}, v{OR_+2*j+1}")
        a(f"ds_write_b32 v5, v{OR_+8} offset:{RED + off + 1024}")
        a(f"ds_write_b128 v3, {vr(T,4)} offset:{RED + off}")
    def body(j, Qcur, Qnext, first=False, last=False, drain_off=0, q_off=0):
        for i in range(8): step(i, Qcur, Qnext, first, drain_off, last, q_off)
    a.wait_vm([("K", 0), ("Q", 0)])
    a(f"{MFMA} {vr(S0,16)}, {vr(KR,4)}, {vr(QA,4)}, 0")
    a("s_nop 7")
    a("s_nop 3")
    stamp(a, 2)
    body(0, QA, QB, first=True, q_off=1024)
    a.wait_vm0()
    stamp(a, 3)
    a("s_mov_b32 s29, 3")
    a.label(pfx + "_loop")
    body(1, QB, QA, drain_off=0, q_off=2048)
    body(2, QA, QB, drain_off=QSL, q_off=3072)
    a(f"v_add_u32 v3, {2*QSL}, v3")
    a(f"v_add_u32 v5, {2*QSL}, v5")
    a("v_add_u32 v6, 2048, v6")
    a("s_sub_u32 s29, s29, 1")
    a("s_cmp_lg_u32 s29, 0")
    a(f"s_cbranch_scc1 {pfx}_loop")
    stamp(a, 4)
    a("s_setprio 0")
    body(7, QB, QA, last=True, drain_off=0)
    stamp(a, 5)
    a("s_nop 1")
    a(f"{MFMA} {vr(OR_,16)}, {vr(VR_+8*7+4,4)}, {vr(PR+4,4)}, {vr(OR_,16)}")
    a("s_lshl_b32 s33, s22, 3")
    a("s_add_u32 s33, s33, s20")
    a("s_lshl_b32 s34, s33, 15")
    a("s_lshl_b32 s35, s21, 10")
    a("s_add_u32 s34, s34, s35")
    a(f"s_add_u32 s34, s34, {OF}")
    a("s_nop 5")
    drain(S0, QSL)
    a(f"s_mul_i32 s35, s20, {QSL}")
    a("v_add_u32 v3, s35, v1")
    a("v_and_b32 v7, 31, v0")
    a("v_lshl_add_u32 v5, v7, 2, s35")
    a(f"""v_lshrrev_b32 v4, 3, v7
          v_lshlrev_b32 v4, 2, v4
          v_and_or_b32 v4, v7, 3, v4
          v_bfe_u32 v6, v0, 2, 1
          v_lshrrev_b32 v7, 5, v0
          v_xor_b32 v6, v6, v7
          v_lshl_or_b32 v4, v6, 4, v4
          v_and_b32 v6, 1, v4
          v_lshlrev_b32 v6, 4, v6
          v_lshlrev_b32 v6, v6, 0x3f80_
          v_lshrrev_b32 v4, 1, v4""".replace("v_lshlrev_b32 v6, v6, 0x3f80_", "v_mov_b32 v7, 0x3f80\n v_lshlrev_b32 v6, v6, v7"))
    for j in range(4):
        a(f"v_cmp_eq_u32 vcc, {j}, v4")
        a("s_nop 1")
        a(f"v_cndmask_b32 v{QB+j}, 0, v6, vcc")
    a("s_waitcnt lgkmcnt(0)")
    a("s_barrier")
    stamp(a, 6)
    T = KR
    for w in range(8):
        a(f"ds_read_b128 {vr(T+4*w,4)}, v3 offset:{RED + w*SLOT}")
        if w == 3:
            for u in range(8): a(f"ds_read_b32 v{S0+u}, v5 offset:{RED + u*SLOT + 1024}")
    for w in range(8):
        a(f"s_waitcnt lgkmcnt({min(15, 15-w) if w < 4 else 7-w})")
        a(f"{MFMA} {vr(OR_,16)}, {vr(QB,4)}, {vr(T+4*w,4)}, {'0' if w == 0 else vr(OR_,16)}")
        if w == 4:
            for u in range(4): a(f"v_add_f32 v{S0+u}, v{S0+u}, v{S0+4+u}")
            a(f"v_add_f32 v{S0}, v{S0}, v{S0+1}")
            a(f"v_add_f32 v{S0+2}, v{S0+2}, v{S0+3}")
            a(f"v_add_f32 v{S0}, v{S0}, v{S0+2}")
    a("s_nop 11")
    a(f"v_mov_b32 v{OR_+8}, v{S0}")
    a(f"""v_max3_f32 v7, abs(v{OR_}), abs(v{OR_+1}), abs(v{OR_+2})
          v_max3_f32 v7, abs(v{OR_+3}), abs(v{OR_+4}), v7
          v_max3_f32 v7, abs(v{OR_+5}), abs(v{OR_+6}), v7
          v_max_f32 v7, abs(v{OR_+7}), v7
          v_add_f32 v5, v{OR_}, v{OR_+1}
          v_add_f32 v5, v5, v{OR_+2}
          v_add_f32 v5, v5, v{OR_+3}
          v_add_f32 v5, v5, v{OR_+4}
          v_add_f32 v5, v5, v{OR_+5}
          v_add_f32 v5, v5, v{OR_+6}
          v_add_f32 v5, v5, v{OR_+7}
          v_cmp_o_f32 s[38:39], v5, v5
          v_cmp_gt_f32 vcc, 0x7e800000, v7
          s_and_b64 s[38:39], s[38:39], vcc
          v_cmp_le_f32 vcc, 0x1f800000, v{OR_+8}
          s_and_b64 s[38:39], s[38:39], vcc
          v_cmp_ge_f32 vcc, 0x5f800000, v{OR_+8}
          s_and_b64 s[38:39], s[38:39], vcc
          s_cmp_eq_u64 s[38:39], -1
          s_cbranch_scc0 {pfx}_slow""")
    a.label(pfx + "_fin")
    a(f"v_rcp_f32 v7, v{OR_+8}")
    a("s_nop 0")
    for r in range(8): a(f"v_mul_f32 v{OR_+r}, v7, v{OR_+r}")
    for j in range(4): a(f"v_cvt_pk_bf16_f32 v{PR+j}, v{OR_+2*j}, v{OR_+2*j+1}")
    a(f"buffer_store_dwordx4 {vr(PR,4)}, v1, s[8:11], s34 offen")
    stamp(a, 7)
    stamp_flush(a, 8, 8, 1)
    a("s_endpgm")
    a.label(pfx + "_slow")
    a(f"""s_lshl_b32 s35, s21, 16
          s_lshl_b32 s33, s33, 10
          s_add_u32 s33, s33, s35
          s_add_u32 s33, s33, {QF}
          buffer_load_dwordx4 {vr(QA,4)}, v1, s[8:11], s33 offen
          s_add_u32 s24, s35, {KF}
          s_add_u32 s26, s35, {VF}
          v_mov_b32 v7, 0xff800000
          s_mov_b32 s29, 0""")
    a.label(pfx + "_mx")
    a(f"""s_add_u32 s33, s24, s29
          buffer_load_dwordx4 {vr(KR,4)}, v1, s[8:11], s33 offen
          s_waitcnt vmcnt(0)
          {MFMA} {vr(S0,16)}, {vr(KR,4)}, {vr(QA,4)}, 0
          s_nop 15""")
    for j in range(8): a(f"v_max3_f32 v7, v{S0+2*j}, v{S0+2*j+1}, v7")
    a(f"""s_add_u32 s29, s29, 1024
          s_cmp_lt_u32 s29, 65536
          s_cbranch_scc1 {pfx}_mx
          v_mov_b32 v5, v7
          s_nop 1
          v_permlane32_swap_b32 v5, v7
          s_nop 1
          v_max_f32 v7, v5, v7
          v_sub_f32 v7, 0, v7""")
    for r in range(16): a(f"v_mov_b32 v{S1+r}, v7")
    for r in range(16): a(f"v_mov_b32 v{OR_+r}, 0")
    a("s_mov_b32 s29, 0")
    a.label(pfx + "_sl")
    a(f"""s_add_u32 s33, s24, s29
          buffer_load_dwordx4 {vr(KR,4)}, v1, s[8:11], s33 offen
          s_add_u32 s33, s26, s29
          s_mov_b64 exec, s[36:37]
          buffer_load_dwordx4 {vr(VR_,4)}, v2, s[8:11], s33 offen
          buffer_load_dwordx4 {vr(VR_+4,4)}, v2, s[8:11], s33 offen offset:512
          s_mov_b64 exec, -1
          s_waitcnt vmcnt(0)
          {MFMA} {vr(S0,16)}, {vr(KR,4)}, {vr(QA,4)}, {vr(S1,16)}
          s_nop 15""")
    for r in range(16): a(f"v_exp_f32 v{S0+r}, v{S0+r}")
    a("s_nop 0")
    for j in range(8): a(f"v_cvt_pk_bf16_f32 v{PR+j}, v{S0+2*j}, v{S0+2*j+1}")
    a(f"""s_nop 1
          {MFMA} {vr(OR_,16)}, {vr(VR_,4)}, {vr(PR,4)}, {vr(OR_,16)}
          {MFMA} {vr(OR_,16)}, {vr(VR_+4,4)}, {vr(PR+4,4)}, {vr(OR_,16)}
          s_add_u32 s29, s29, 1024
          s_cmp_lt_u32 s29, 65536
          s_cbranch_scc1 {pfx}_sl
          s_nop 15
          s_branch {pfx}_fin""")

def gen_attn():
    a = Asm()
    a("s_cmp_ge_u32 s2, 256")
    a("s_cbranch_scc1 La_end")
    stamp(a, 0)
    a(f"s_load_dwordx2 s[4:5], s[0:1], {WS}")
    wave_id(a, 20)
    a("s_waitcnt lgkmcnt(0)")
    srd(a, 8, 4, WS_BYTES)
    gen_attn_body(a, "La")
    a.label("La_end")
    a("s_endpgm")
    return a.text(), 168

def reduce4_and_pick(a, ACC, vL, lds_base_sgpr_stride, region, sync, wave=20):
    stride = lds_base_sgpr_stride
    a(f"s_mul_i32 s33, s{wave}, {stride}")
    a(f"s_add_u32 s33, s33, {region}")
    a(f"v_add_u32 v4, s33, v{vL}")
    for t in range(4):
        for q in range(4):
            a(f"ds_write_b128 v4, {vr(ACC[t]+4*q,4)} offset:{t*4096+q*1024}")
    a("s_waitcnt lgkmcnt(0)")
    sync()
    a(f"s_lshl_b32 s33, s{wave}, 12")
    a(f"s_add_u32 s33, s33, {region}")
    a(f"v_add_u32 v4, s33, v{vL}")
    if 3*stride + 3072 > 65535:
        a(f"v_add_u32 v5, {2*stride}, v4")
    for w in range(4):
        for q in range(4):
            if 3*stride + 3072 > 65535 and w >= 2:
                a(f"ds_read_b128 {vr(ACC[w]+4*q,4)}, v5 offset:{(w-2)*stride+q*1024}")
            else:
                a(f"ds_read_b128 {vr(ACC[w]+4*q,4)}, v4 offset:{w*stride+q*1024}")
        if w == 1: pass
    a("s_waitcnt lgkmcnt(8)")
    for r in range(16): a(f"v_add_f32 v{ACC[0]+r}, v{ACC[0]+r}, v{ACC[1]+r}")
    a("s_waitcnt lgkmcnt(0)")
    for r in range(16): a(f"v_add_f32 v{ACC[2]+r}, v{ACC[2]+r}, v{ACC[3]+r}")
    for r in range(16): a(f"v_add_f32 v{ACC[0]+r}, v{ACC[0]+r}, v{ACC[2]+r}")

def gen_wo():
    a = Asm()
    a("s_cmp_ge_u32 s2, 256")
    a("s_cbranch_scc1 Lo_end")
    stamp(a, 0)
    a(f"s_load_dwordx4 s[4:7], s[0:1], {B_WO}")
    a(f"s_load_dwordx2 s[28:29], s[0:1], {WS}")
    wave_id(a, 20)
    a("""s_and_b32 s30, s2, 7
         s_lshr_b32 s31, s2, 3
         s_lshl_b32 s21, s30, 2
         s_and_b32 s33, s31, 3
         s_add_u32 s21, s21, s33
         s_lshr_b32 s22, s31, 2""")
    a(f"""s_lshl_b32 s24, s21, 16
          s_lshl_b32 s33, s20, 13
          s_add_u32 s24, s24, s33
          s_add_u32 s24, s24, {OF}
          s_add_u32 s25, s24, 4096
          s_add_u32 s26, s24, 32768
          s_add_u32 s27, s24, 36864
          s_lshl_b32 s35, s20, 17
          s_lshl_b32 s33, s22, 7
          s_add_u32 s35, s35, s33
          s_lshl_b32 s36, s20, 14""")
    a("""v_lshlrev_b32 v1, 4, v0
         v_lshrrev_b32 v2, 3, v0
         v_lshlrev_b32 v2, 10, v2
         v_and_b32 v3, 7, v0
         v_bfe_u32 v4, v0, 4, 1
         v_lshlrev_b32 v4, 2, v4
         v_xor_b32 v3, v3, v4
         v_lshl_add_u32 v2, v3, 4, v2""")
    a("s_waitcnt lgkmcnt(0)")
    srd(a, 8, 4, 512*512*2)
    srd(a, 12, 6, 2048*1024*4)
    srd(a, 16, 28, WS_BYTES)
    OFR = 96
    for hh in range(8):
        for n in range(2):
            a(f"s_add_u32 m0, s36, {(2*hh+n)*1024}")
            a(f"s_add_u32 s33, s35, {(2*hh+n)*8192}")
            a.vmem(f"buffer_load_dwordx4 v2, s[8:11], s33 offen lds", ("h", hh))
        for t in range(2):
            a.vmem(f"buffer_load_dwordx4 {vr(OFR+8*hh+4*t,4)}, v1, s[16:19], s{24+2*t+(hh>>2)} offen offset:{(hh&3)*1024}", ("h", hh))
    a("""v_lshrrev_b32 v5, 5, v0
         v_lshlrev_b32 v5, 2, v5
         v_bfe_u32 v6, v0, 2, 2
         v_add_u32 v5, v5, v6
         v_lshlrev_b32 v5, 7, v5
         v_bfe_u32 v6, v0, 3, 1
         v_lshl_add_u32 v5, v6, 6, v5
         v_bfe_u32 v6, v0, 4, 1
         v_lshl_add_u32 v5, v6, 5, v5
         v_and_b32 v6, 3, v0
         v_lshl_add_u32 v5, v6, 3, v5
         v_add_u32 v6, s36, v5
         v_xor_b32 v7, 64, v6""")
    ACC = [32, 48, 64, 80]; WFR = [8, 16]
    def reads(hh):
        a.wait_vm(("h", hh))
        for nb in range(2):
            for q in range(2):
                a.lds(f"ds_read_b64_tr_b16 {vr(WFR[hh&1]+4*nb+2*q,2)}, v{6+nb} offset:{hh*2048+q*1024}", ("r", hh))
    stamp(a, 1)
    reads(0)
    stamp(a, 2)
    for hh in range(8):
        if hh + 1 < 8: reads(hh + 1)
        a.wait_lg(("r", hh))
        for t in range(2):
            for nb in range(2):
                A = ACC[2*t+nb]
                a(f"{MFMA} {vr(A,16)}, {vr(OFR+8*hh+4*t,4)}, {vr(WFR[hh&1]+4*nb,4)}, {'0' if hh==0 else vr(A,16)}")
    a("""s_lshr_b32 s33, s20, 1
         s_lshl_b32 s34, s21, 1
         s_add_u32 s33, s33, s34
         s_lshl_b32 s33, s33, 17
         s_and_b32 s34, s20, 1
         s_lshl_b32 s37, s22, 1
         s_add_u32 s34, s34, s37
         s_lshl_b32 s34, s34, 7
         s_add_u32 s33, s33, s34
         s_add_u32 s38, s33, 2048
         v_lshrrev_b32 v2, 5, v0
         v_lshlrev_b32 v2, 14, v2
         v_and_b32 v3, 31, v0
         v_lshl_add_u32 v2, v3, 2, v2""")
    stamp(a, 3)
    reduce4_and_pick(a, ACC, 1, 16384, 0, lambda: a("s_barrier"))
    stamp(a, 4)
    for r in range(16):
        row = 8*(r >> 2) + (r & 3)
        a(f"s_add_u32 s33, s38, {row*4096}")
        a(f"buffer_store_dword v{ACC[0]+r}, v2, s[12:15], s33 offen")
    stamp(a, 5)
    if STAMP:
        a("s_waitcnt vmcnt(0)")
        stamp(a, 6)
        stamp_flush(a, 7, 16, 2)
    a.label("Lo_end")
    a("s_endpgm")
    return a.text(), 160

SSMB = 81920
SREG = 18432
EXB = SSMB + 4*SREG
GXB = EXB + 3840
CNT = GXB + 256
LDS_TOTAL = CNT + 64
SPIN = 1 << 16
PACE = 's_nop 0'
PACE2 = 's_nop 15'
def ssm_lds_init(a):
    a(f"""v_lshlrev_b32 v2, 4, v0
          v_mov_b32 v4, 0
          v_mov_b32 v5, 0
          v_mov_b32 v6, 0
          v_mov_b32 v7, 0
          v_add_u32 v2, {EXB}, v2
          ds_write_b128 v2, v[4:7]
          ds_write_b128 v2, v[4:7] offset:768
          v_mov_b32 v2, {CNT}
          ds_write_b128 v2, v[4:7]
          ds_write_b128 v2, v[4:7] offset:16""")

def lds_arrive(a, idx, vA=14, vT=15):
    a(f"""v_mov_b32 v{vA}, {CNT + 4*idx}
          v_mov_b32 v{vT}, 1
          s_mov_b64 exec, 1
          ds_add_u32 v{vA}, v{vT}
          s_mov_b64 exec, -1""")
def lds_wait(a, idx, target, lbl, sleep=1, vA=14, vT=15):
    a(f"""v_mov_b32 v{vA}, {CNT + 4*idx}
          s_mov_b32 s39, {SPIN}""")
    a.label(lbl)
    a(f"""ds_read_b32 v{vT}, v{vA}
          s_sub_u32 s39, s39, 1
          s_cbranch_scc1 {lbl}_x
          s_waitcnt lgkmcnt(0)
          v_readfirstlane_b32 s33, v{vT}
          s_cmp_ge_u32 s33, {target}
          s_cbranch_scc1 {lbl}_x
          s_sleep {sleep}
          s_branch {lbl}""")
    a.label(lbl + "_x")
    a("s_waitcnt lgkmcnt(0)")
    a.lg = []
def lds_sync(a, idx, lbl):
    lds_arrive(a, idx); lds_wait(a, idx, 4, lbl)

def gen_ssm_body(a, pfx, wait_kv=False):
    a(f"s_load_dwordx8 s[52:59], s[0:1], {A_X}")
    a(f"s_load_dwordx2 s[60:61], s[0:1], {A_BIM}")
    a(f"s_load_dwordx2 s[62:63], s[0:1], {A_LDT}")
    a("""s_setprio 3
         s_and_b32 s30, s2, 7
         s_lshr_b32 s31, s2, 3
         s_lshr_b32 s21, s30, 1
         s_lshl_b32 s21, s21, 2
         s_and_b32 s33, s31, 3
         s_add_u32 s21, s21, s33
         s_and_b32 s22, s30, 1
         s_lshl_b32 s22, s22, 3
         s_lshr_b32 s34, s31, 2
         s_add_u32 s22, s22, s34
         s_lshl_b32 s23, s34, 1
         s_lshl_b32 s33, s33, 2
         s_add_u32 s23, s23, s33""")
    a(f"""s_lshl_b32 s24, s21, 2
          s_add_u32 s24, s24, s20
          s_mov_b32 s29, s24
          s_lshl_b32 s24, s24, 15
          s_lshl_b32 s25, s22, 15
          s_mul_i32 s26, s20, {SREG}
          s_add_u32 s26, s26, {SSMB}""")
    vX, vB, vR = 2, 3, 4
    a(f"""v_lshlrev_b32 v1, 4, v0
          v_and_b32 v8, 3, v0
          v_bfe_u32 v9, v0, 4, 2
          v_xor_b32 v8, v8, v9
          v_lshlrev_b32 v8, 4, v8
          v_lshrrev_b32 v9, 2, v0
          v_lshl_add_u32 v{vB}, v9, 10, v8
          v_bfe_u32 v9, v0, 2, 2
          v_bfe_u32 v10, v0, 4, 1
          v_lshl_add_u32 v9, v10, 4, v9
          v_bfe_u32 v10, v0, 5, 1
          v_lshl_add_u32 v9, v10, 2, v9
          v_lshl_add_u32 v{vX}, v9, 10, v8
          v_and_b32 v8, 31, v0
          v_bfe_u32 v9, v0, 2, 2
          v_lshrrev_b32 v10, 5, v0
          v_xor_b32 v9, v9, v10
          v_lshlrev_b32 v9, 4, v9
          v_lshl_add_u32 v9, v8, 6, v9
          v_add_u32 v{vR}, s26, v9
          v_xor_b32 v9, 32, v9
          v_add_u32 v{vR+1}, s26, v9
          s_lshl_b32 s33, s22, 6
          v_lshl_add_u32 v8, v8, 1, s33""")
    a("s_waitcnt lgkmcnt(0)")
    srd(a, 12, 52, 2048*512*2)
    srd(a, 16, 58, 512*512*2)
    srd(a, 40, 60, 512*512*2)
    PA, PB_, PD = 6, 7, 9
    a.vmem(f"global_load_ushort v{PA}, v8, s[54:55]", "par")
    a.vmem(f"global_load_ushort v{PB_}, v8, s[56:57]", "par")
    a.vmem(f"global_load_ushort v{PD}, v8, s[62:63]", "par")
    def dma1_parts(c):
        base = (c % 3)*6144
        def p0():
            a(f"s_add_u32 s33, s23, {c}")
            a("s_and_b32 s33, s33, 15")
            a("s_lshl_b32 s33, s33, 6")
            a("s_add_u32 s34, s33, s24")
            a("s_add_u32 s35, s33, s25")
            for n in range(2):
                a(f"s_add_u32 m0, s26, {base + n*1024}")
                a(f"s_add_u32 s33, s34, {n*8192}")
                a.vmem(f"buffer_load_dwordx4 v{vX}, s[12:15], s33 offen lds", ("a", c))
        def pm(mat):
            for n in range(2):
                a(f"s_add_u32 m0, s26, {base + 2048 + mat*2048 + n*1024}")
                a(f"s_add_u32 s33, s35, {n*16384}")
                a.vmem(f"buffer_load_dwordx4 v{vB}, s[{16+24*mat}:{19+24*mat}], s33 offen lds", ("a", c))
        return [p0, lambda: pm(0), lambda: pm(1)]
    def dma1(c):
        for p in dma1_parts(c): p()
    if not wait_kv:
        for c in range(3): dma1(c)
    LR, LI, NLI, L16R, L16I, L128R, L128I, LKR, LKI, LSR, LSI, SGR, NSI, NSR, ZR, ZI = range(128, 144)
    a.wait_vm("par")
    a(f"""v_lshlrev_b32 v{PA}, 16, v{PA}
          v_lshlrev_b32 v{PB_}, 16, v{PB_}
          v_lshlrev_b32 v{PD}, 16, v{PD}
          v_mul_f32 v{PD}, {f2h(LOG2E)}, v{PD}
          v_exp_f32 v{PD}, v{PD}
          s_nop 0
          v_cvt_pk_bf16_f32 v{PD}, v{PD}, v{PD}
          v_and_b32 v{PD}, 0xffff0000, v{PD}
          v_mul_f32 v{ZR}, v{PD}, v{PA}
          v_mul_f32 v{ZI}, v{PD}, v{PB_}
          v_mul_f32 v{ZR}, {f2h(LOG2E)}, v{ZR}
          v_mul_f32 v{ZI}, {f2h(0.15915494309189535)}, v{ZI}""")
    def cpow(dr, di, n):
        a(f"""v_mul_f32 v10, {n}, v{ZR}
              v_mul_f32 v11, {n}, v{ZI}
              v_exp_f32 v10, v10
              v_fract_f32 v11, v11
              v_cos_f32 v{dr}, v11
              v_sin_f32 v{di}, v11
              s_nop 0
              v_mul_f32 v{dr}, v10, v{dr}
              v_mul_f32 v{di}, v10, v{di}""")
    cpow(LR, LI, "1.0"); cpow(L16R, L16I, f2h(16.0)); cpow(L128R, L128I, f2h(128.0)); cpow(LKR, LKI, f2h(1024.0))
    a(f"""v_lshrrev_b32 v12, 5, v0
          s_lshl_b32 s33, s20, 1
          v_add_u32 v12, s33, v12
          v_lshlrev_b32 v13, 4, v12
          v_cvt_f32_u32 v13, v13""")
    cpow(LSR, LSI, "v13")
    a(f"""v_sub_f32 v{NLI}, 0, v{LI}
          v_mul_f32 v10, v{PA}, v{PA}
          v_fmac_f32 v10, v{PB_}, v{PB_}
          v_rcp_f32 v10, v10
          v_subrev_f32 v11, 1.0, v{LR}
          v_add_f32 v10, v10, v10
          v_mul_f32 v{SGR}, v11, v{PA}
          v_fmac_f32 v{SGR}, v{LI}, v{PB_}
          v_mul_f32 v{NSI}, v11, v{PB_}
          v_fmac_f32 v{NSI}, v{NLI}, v{PA}
          v_mul_f32 v{SGR}, v10, v{SGR}
          v_mul_f32 v{NSI}, v10, v{NSI}
          v_sub_f32 v{NSR}, 0, v{SGR}""")
    if wait_kv:
        a("s_barrier")
        for c in range(3): dma1(c)
    stamp(a, 1)
    UR, UI = 16, 32
    FR = [48, 72]
    def reads1(c):
        a.wait_vm(("a", c))
        for mat in range(3):
            for s in range(2):
                a.lds(f"ds_read_b128 {vr(FR[c&1]+8*mat+4*s,4)}, v{vR+s} offset:{(c%3)*6144 + mat*2048}", ("r", c))
    reads1(0)
    for c in range(16):
        if c + 1 < 16: reads1(c + 1)
        a.wait_lg(("r", c))
        parts = dma1_parts(c + 3) if c + 3 < 16 else [lambda: a("s_nop 15")]*3
        F = FR[c & 1]
        for s in range(2):
            z = c == 0 and s == 0
            a(f"{MFMA} {vr(UR,16)}, {vr(F+4*s,4)}, {vr(F+8+4*s,4)}, {'0' if z else vr(UR,16)}")
            parts[s]()
            a(PACE)
            a(f"{MFMA} {vr(UI,16)}, {vr(F+4*s,4)}, {vr(F+16+4*s,4)}, {'0' if z else vr(UI,16)}")
            if s == 0: a("s_nop 15")
            else: parts[2]()
            a(PACE)
    stamp(a, 2)
    a(f"s_load_dwordx4 s[52:55], s[0:1], {A_CRE}")
    a(f"s_load_dwordx2 s[56:57], s[0:1], {A_DSK}")
    a(f"s_load_dwordx2 s[58:59], s[0:1], {OUT}")
    a("""s_lshl_b32 s27, s30, 2
         s_and_b32 s33, s31, 3
         s_add_u32 s27, s27, s33
         s_lshr_b32 s28, s31, 2
         s_lshl_b32 s36, s28, 16
         s_lshl_b32 s33, s20, 8
         s_add_u32 s36, s36, s33""")
    a("s_waitcnt lgkmcnt(0)")
    srd(a, 16, 52, 512*512*2)
    srd(a, 40, 54, 512*512*2)
    srd(a, 48, 58, 2048*1024*4)
    def dma2(g):
        pbi, mat = g >> 1, g & 1
        for n in range(4):
            a(f"s_add_u32 m0, s26, {(g & 3)*4096 + n*1024}")
            a(f"s_add_u32 s33, s36, {n*16384 + pbi*64}")
            a.vmem(f"buffer_load_dwordx4 v{vB}, s[{16+24*mat}:{19+24*mat}], s33 offen lds", ("c", g))
    for g in range(4): dma2(g)
    E = [(48, 49), (50, 51)]
    pr, pi = UR, UI
    for r in range(1, 16):
        er, ei = E[r & 1]
        a(f"v_fma_f32 v{er}, v{LR}, v{pr}, v{UR+r}")
        a(f"v_fma_f32 v{ei}, v{LR}, v{pi}, v{UI+r}")
        a(f"v_fmac_f32 v{er}, v{NLI}, v{pi}")
        a(f"v_fmac_f32 v{ei}, v{LI}, v{pr}")
        pr, pi = er, ei
    a(f"""s_lshl_b32 s33, s20, 9
          s_add_u32 s33, s33, {EXB + 7*256}
          v_lshl_add_u32 v10, v0, 3, s33
          ds_write_b64 v10, v[50:51]
          v_and_b32 v11, 31, v0
          v_lshlrev_b32 v11, 3, v11
          v_lshl_add_u32 v10, v12, 8, v11
          v_add_u32 v10, {EXB}, v10
          s_waitcnt lgkmcnt(0)""")
    lds_sync(a, 0, pfx + "_s0")
    for i in range(7): a(f"ds_read_b64 {vr(52+2*i,2)}, v10 offset:{i*256}")
    def horner(dst, src0, n, mr, mi, tmp):
        pr, pi = src0, src0 + 1
        for i in range(1, n):
            er, ei = (dst, dst + 1) if i == n - 1 else (tmp + 2*(i & 1), tmp + 2*(i & 1) + 1)
            a(f"v_fma_f32 v{er}, v{mr}, v{pr}, v{src0+2*i}")
            a(f"v_fma_f32 v{ei}, v{mr}, v{pi}, v{src0+2*i+1}")
            a(f"v_fma_f32 v{er}, -v{mi}, v{pi}, v{er}")
            a(f"v_fmac_f32 v{ei}, v{mi}, v{pr}")
            pr, pi = er, ei
    a("s_waitcnt lgkmcnt(0)")
    PIN = 68
    horner(PIN, 52, 7, L16R, L16I, 72)
    a(f"""v_fma_f32 v70, v{L16R}, v{PIN}, v50
          v_fma_f32 v71, v{L16R}, v{PIN+1}, v51
          v_fma_f32 v70, -v{L16I}, v{PIN+1}, v70
          v_fmac_f32 v71, v{L16I}, v{PIN}
          v_max_f32 v70, v70, v70
          v_max_f32 v71, v71, v71
          s_lshl_b32 s34, s22, 13
          s_lshl_b32 s33, s21, 8
          s_add_u32 s34, s34, s33
          s_add_u32 s34, s34, {EB}
          s_add_u32 s35, s34, 4096
          s_cmp_eq_u32 s20, 3
          s_cbranch_scc0 {pfx}_nopub
          s_mov_b32 exec_lo, 0
          buffer_store_dwordx2 v[70:71], v11, s[8:11], s35 offen sc1
          s_mov_b32 exec_lo, -1""")
    a.label(pfx + "_nopub")
    stamp(a, 3)
    a(f"""v_add_u32 v9, {GXB}, v11
          s_cmp_eq_u32 s20, 0
          s_cbranch_scc0 {pfx}_gw
          v_lshrrev_b32 v10, 5, v0
          v_lshl_add_u32 v10, v10, 11, v11
          s_mov_b32 s39, {SPIN}
          s_sleep 8""")
    a.label(pfx + "_ep")
    for i in range(8): a(f"buffer_load_dwordx2 {vr(48+2*i,2)}, v10, s[8:11], s34 offen offset:{i*256} sc1")
    a(f"""s_sub_u32 s39, s39, 1
          s_cbranch_scc1 {pfx}_ex
          s_waitcnt vmcnt(0)
          v_max3_u32 v13, v48, v49, v50""")
    for i in range(51, 63, 2): a(f"v_max3_u32 v13, v{i}, v{i+1}, v13")
    a(f"""v_max_u32 v13, v63, v13
          v_cmp_eq_u32 vcc, -1, v13
          s_and_b64 vcc, exec, vcc
          s_cbranch_vccz {pfx}_ex
          s_sleep 8
          s_branch {pfx}_ep""")
    a.label(pfx + "_ex")
    a("s_waitcnt vmcnt(0)")
    horner(64, 48, 8, L128R, L128I, 72)
    a(f"""v_mov_b32 v66, v64
          v_mov_b32 v67, v65
          s_nop 1
          v_permlane32_swap_b32 v64, v66
          v_permlane32_swap_b32 v65, v67
          s_nop 1
          v_fma_f32 v66, v{LKR}, v64, v66
          v_fma_f32 v67, v{LKR}, v65, v67
          v_fma_f32 v66, -v{LKI}, v65, v66
          v_fmac_f32 v67, v{LKI}, v64
          ds_write_b64 v9, v[66:67]""")
    lds_arrive(a, 3)
    a.label(pfx + "_gw")
    lds_wait(a, 3, 1, pfx + "_g", sleep=2)
    a("ds_read_b64 v[66:67], v9")
    a("s_waitcnt lgkmcnt(0)")
    stamp(a, 4)
    a(f"""s_nop 0
          v_fmac_f32 v{PIN}, v{LSR}, v66
          v_fmac_f32 v{PIN+1}, v{LSR}, v67
          v_fma_f32 v{PIN}, -v{LSI}, v67, v{PIN}
          v_fmac_f32 v{PIN+1}, v{LSI}, v66""")
    HR, HI = 48, 56
    pr, pi = PIN, PIN + 1
    for r in range(16):
        a(f"v_fmac_f32 v{UR+r}, v{LR}, v{pr}")
        a(f"v_fmac_f32 v{UI+r}, v{LR}, v{pi}")
        a(f"v_fmac_f32 v{UR+r}, v{NLI}, v{pi}")
        a(f"v_fmac_f32 v{UI+r}, v{LI}, v{pr}")
        pr, pi = UR + r, UI + r
        t = 72 + 2*(r & 1)
        a(f"v_mul_f32 v{t}, v{SGR}, v{pr}")
        a(f"v_mul_f32 v{t+1}, v{NSI}, v{pr}")
        a(f"v_fmac_f32 v{t}, v{NSI}, v{pi}")
        a(f"v_fmac_f32 v{t+1}, v{NSR}, v{pi}")
        if r & 1:
            a(f"v_cvt_pk_bf16_f32 v{HR+(r>>1)}, v72, v74")
            a(f"v_cvt_pk_bf16_f32 v{HI+(r>>1)}, v73, v75")
    a(f"""v_and_b32 v10, 31, v0
          v_lshlrev_b32 v10, 6, v10
          v_lshrrev_b32 v11, 5, v0
          v_lshl_add_u32 v10, v11, 5, v10
          s_add_u32 s33, s26, 16384
          v_add_u32 v10, s33, v10
          v_lshlrev_b32 v11, 3, v11
          v_bfe_u32 v13, v0, 2, 2
          v_add_u32 v11, v11, v13
          v_lshlrev_b32 v11, 6, v11
          v_bfe_u32 v13, v0, 4, 1
          v_lshl_add_u32 v11, v13, 5, v11
          v_and_b32 v13, 3, v0
          v_lshl_add_u32 v11, v13, 3, v11
          v_add_u32 v11, s33, v11
          s_lshl_b32 s34, s29, 4
          s_add_u32 s34, s34, s22
          s_and_b32 s35, s34, 31
          s_lshl_b32 s35, s35, 2
          s_lshr_b32 s33, s29, 1
          s_mul_i32 s33, s33, {FST}
          s_add_u32 s35, s35, s33
          s_add_u32 s35, s35, {FH}
          s_lshl_b32 s34, s34, 12
          s_add_u32 s34, s34, {HF}""")
    HT = 76
    for mat, H in enumerate((HR, HI)):
        a(f"ds_write_b128 v10, {vr(H,4)}")
        a(f"ds_write_b128 v10, {vr(H+4,4)} offset:16")
        for sp in range(2):
            for q in range(2):
                a(f"ds_read_b64_tr_b16 {vr(HT+8*mat+4*sp+2*q,2)}, v11 offset:{(16*sp+4*q)*64}")
    a("s_waitcnt lgkmcnt(4)")
    for sp in range(2): a(f"buffer_store_dwordx4 {vr(HT+4*sp,4)}, v1, s[8:11], s34 offen offset:{sp*1024} sc1")
    a("s_waitcnt lgkmcnt(0)")
    for sp in range(2): a(f"buffer_store_dwordx4 {vr(HT+8+4*sp,4)}, v1, s[8:11], s34 offen offset:{2048+sp*1024} sc1")
    a(f"""v_mov_b32 v13, 1
          v_mov_b32 v10, 0
          s_waitcnt vmcnt(0)
          s_mov_b64 exec, 1
          buffer_store_dword v13, v10, s[8:11], s35 offen sc1
          s_mov_b64 exec, -1""")
    stamp(a, 5)
    a(f"""s_cmp_eq_u32 s20, 0
          s_cbranch_scc0 {pfx}_hw
          v_and_b32 v10, 31, v0
          v_lshlrev_b32 v10, 2, v10
          s_mul_i32 s34, s27, {FST}
          s_add_u32 s34, s34, {FH}
          s_mov_b32 s39, {SPIN}
          s_sleep 8""")
    a.label(pfx + "_hp")
    a(f"""buffer_load_dword v13, v10, s[8:11], s34 offen sc1
          s_sub_u32 s39, s39, 1
          s_cbranch_scc1 {pfx}_hx
          s_waitcnt vmcnt(0)
          v_cmp_ne_u32 vcc, 1, v13
          s_and_b64 vcc, exec, vcc
          s_cbranch_vccz {pfx}_hx
          s_sleep 12
          s_branch {pfx}_hp""")
    a.label(pfx + "_hx")
    lds_arrive(a, 4)
    a.label(pfx + "_hw")
    lds_wait(a, 4, 1, pfx + "_h", sleep=2)
    a.wait_vm0()
    stamp(a, 6)
    a(f"""s_lshl_b32 s24, s27, 17
          s_lshl_b32 s33, s20, 14
          s_add_u32 s24, s24, s33
          s_add_u32 s24, s24, {HF}""")
    ACC = [16, 32, 48, 64]; HFR = 80; CF = 144
    def ldh(g):
        for half in range(2):
            for t in range(2):
                k = 2*g + half
                a(f"s_add_u32 s33, s24, {t*65536 + (k>>2)*4096}")
                a.vmem(f"buffer_load_dwordx4 {vr(HFR+16*(g&3)+8*half+4*t,4)}, v1, s[8:11], s33 offen offset:{(k&3)*1024} sc1", ("h", g))
    for g in range(4): ldh(g)
    for g in range(8):
        a.wait_vm([("c", g), ("h", g)])
        for half in range(2):
            for b in range(2):
                a.lds(f"ds_read_b128 {vr(CF+8*half+4*b,4)}, v{vR+half} offset:{(g&3)*4096 + b*2048}", ("r", half))
        for half in range(2):
            a.wait_lg(("r", half))
            if half == 1 and g + 4 < 8: dma2(g + 4)
            for t in range(2):
                for b in range(2):
                    A = ACC[2*t+b]
                    a(f"{MFMA} {vr(A,16)}, {vr(HFR+16*(g&3)+8*half+4*t,4)}, {vr(CF+8*half+4*b,4)}, {'0' if g==0 and half==0 else vr(A,16)}")
                    a(PACE2)
        if g + 4 < 8: ldh(g + 4)
    stamp(a, 7)
    a("""s_lshr_b32 s33, s20, 1
         s_lshl_b32 s34, s27, 1
         s_add_u32 s33, s33, s34
         s_and_b32 s34, s20, 1
         s_lshl_b32 s35, s28, 1
         s_add_u32 s34, s34, s35
         s_lshl_b32 s37, s33, 17
         s_lshl_b32 s35, s34, 7
         s_add_u32 s37, s37, s35
         s_lshl_b32 s38, s33, 15
         s_lshl_b32 s35, s34, 6
         s_add_u32 s38, s38, s35
         v_and_b32 v3, 31, v0
         v_lshrrev_b32 v10, 5, v0
         v_lshlrev_b32 v2, 14, v10
         v_lshl_add_u32 v2, v3, 2, v2
         v_lshlrev_b32 v10, 12, v10
         v_lshl_add_u32 v10, v3, 1, v10
         v_lshl_add_u32 v11, v3, 1, s35""")
    XS = 96
    a(f"global_load_ushort v{XS+16}, v11, s[56:57]")
    for r in range(16):
        row = 8*(r >> 2) + (r & 3)
        a(f"s_add_u32 s33, s38, {(row>>2)*4096}")
        a(f"buffer_load_ushort v{XS+r}, v10, s[12:15], s33 offen offset:{(row&3)*1024}")
    reduce4_and_pick(a, ACC, 1, SREG, SSMB, lambda: lds_sync(a, 1, pfx + "_s1"))
    a("s_waitcnt vmcnt(0)")
    a(f"v_lshlrev_b32 v{XS+16}, 16, v{XS+16}")
    for r in range(16):
        row = 8*(r >> 2) + (r & 3)
        a(f"v_lshlrev_b32 v{XS+r}, 16, v{XS+r}")
        a(f"s_add_u32 s33, s37, {row*4096}")
        a(f"v_fmac_f32 v{ACC[0]+r}, v{XS+r}, v{XS+16}")
        a(f"buffer_store_dword v{ACC[0]+r}, v2, s[48:51], s33 offen")
    stamp(a, 8)
    stamp_flush(a, 9, 8, 3)
    a("s_endpgm")

def gen_ssm():
    a = Asm()
    a("s_cmp_ge_u32 s2, 256")
    a("s_cbranch_scc1 Ls_end")
    stamp(a, 0)
    a(f"s_load_dwordx2 s[4:5], s[0:1], {WS}")
    wave_id(a, 20)
    ssm_lds_init(a)
    a("s_waitcnt lgkmcnt(0)")
    a("s_barrier")
    srd(a, 8, 4, WS_BYTES)
    gen_ssm_body(a, "Ls")
    a.label("Ls_end")
    a("s_endpgm")
    return a.text(), 168

def gen_mid():
    a = Asm()
    a("s_cmp_ge_u32 s2, 256")
    a("s_cbranch_scc1 Lm_end")
    stamp(a, 0)
    a(f"s_load_dwordx2 s[4:5], s[0:1], {WS}")
    wave_id(a, 20)
    a("s_cmp_ge_u32 s20, 8")
    a("s_cbranch_scc1 Lm_ssm")
    a("s_waitcnt lgkmcnt(0)")
    srd(a, 8, 4, WS_BYTES)
    gen_attn_body(a, "La")
    a.label("Lm_ssm")
    a.vm = []; a.lg = []
    a("s_sub_u32 s20, s20, 8")
    ssm_lds_init(a)
    a("s_waitcnt lgkmcnt(0)")
    srd(a, 8, 4, WS_BYTES)
    gen_ssm_body(a, "Ls", wait_kv=True)
    a.label("Lm_end")
    a("s_endpgm")
    return a.text(), 168

HEADER = open("concat_heads__ssm_conv_s5__mha_block__prompt.s.ref").read().split("; Override launch")[0]

def build(kernels, launches):
    s = HEADER
    for (name, grid, block, lds) in launches:
        s += f"; @launch kernel={name} grid=({grid},1,1) block=({block},1,1) lds={lds}\n"
    s += '.amdgcn_target "amdgcn-amd-amdhsa--gfx950"\n'
    for name, (txt, vg) in kernels.items():
        s += kernel_head(name) + txt
    for name, (txt, vg) in kernels.items():
        s += kernel_desc(name, vg)
    return s

if __name__ == "__main__":
    out = sys.argv[1] if len(sys.argv) > 1 else "out.s"
    STAMP = "stamp" in sys.argv[2:]
    if "hdiag" in sys.argv[2:]:
        STAMP = True
        HDIAG = {0: (0, 2, 6, 0), 1: (1, 2, 7, 0), 2: (2, 2, 6, 0), 3: (3, 2, 8, 1)}
    if "split" in sys.argv[2:]:
        kernels = {"qkv_kernel": gen_qkv(), "attn_kernel": gen_attn(), "wo_kernel": gen_wo(), "ssm_kernel": gen_ssm()}
        launches = [("qkv_kernel", 256, 256, 163840), ("attn_kernel", 256, 512, 81920), ("wo_kernel", 256, 256, 65536), ("ssm_kernel", 256, 256, LDS_TOTAL)]
    else:
        kernels = {"qkv_kernel": gen_qkv(), "mid_kernel": gen_mid(), "wo_kernel": gen_wo()}
        launches = [("qkv_kernel", 256, 256, 163840), ("mid_kernel", 256, 768, LDS_TOTAL), ("wo_kernel", 256, 256, 65536)]
    open(out, "w").write(build(kernels, launches))
```
